```python
import torch

def _softmax(x, axis=-1):
    return torch.softmax(x, dim=axis)
def _gelu(x):
    return torch.nn.functional.gelu(x, approximate="tanh")
def _silu(x):
    return torch.nn.functional.silu(x)
def _sigmoid(x):
    return torch.sigmoid(x)
def _layernorm(x, axis=-1, eps=1e-5):
    m = x.mean(dim=axis, keepdim=True)
    v = x.var(dim=axis, keepdim=True, unbiased=False)
    return (x - m) / torch.sqrt(v + eps)
def _scatter_add(tgt, idx, src, axis=0):
    return tgt.clone().index_add_(axis, idx, src)
def _segment_sum(src, seg, n):
    out = torch.zeros((n,) + src.shape[1:], dtype=src.dtype)
    return out.index_add_(0, seg, src)
def _pad(x, pw):
    flat = tuple(v for pair in reversed(pw) for v in pair)
    return torch.nn.functional.pad(x, flat)

kernel_name = 'standalone__modern_conv_block_slak__vision'

def setup_inputs():

    _w = (lambda a: (lambda t: t.to(torch.bfloat16) if t.is_floating_point() else t)(torch.as_tensor(a)))
    H = W = 224
    C = 96
    K = 5
    return {
        "x": _w((lambda *s: torch.randn(*s, dtype=torch.bfloat16) * 0.05)(1, H, W, C)),
        "dw": _w((lambda *s: torch.randn(*s, dtype=torch.bfloat16) * 0.05)(K, K, C)),
        "w1": _w((lambda *s: torch.randn(*s, dtype=torch.bfloat16) * 0.05)(C, 4 * C)),
        "w2": _w((lambda *s: torch.randn(*s, dtype=torch.bfloat16) * 0.05)(4 * C, C)),
        "grn_g": _w((lambda *s: torch.randn(*s, dtype=torch.bfloat16) * 0.05)(4 * C)),
        "grn_b": _w((lambda *s: torch.randn(*s, dtype=torch.bfloat16) * 0.05)(4 * C)),
    }

def reference(x, dw, w1, w2, grn_g, grn_b):
    B, H, W, C = x.shape
    K = dw.shape[0]
    pad = K // 2
    xp = _pad(x, ((0,0),(pad,pad),(pad,pad),(0,0)))
    out = torch.zeros_like(x)
    for i in range(K):
        for j in range(K):
            out = out + xp[:, i:i+H, j:j+W, :] * dw[i, j][None, None, None, :]
    h = _layernorm(out, axis=-1)
    h = _gelu(h @ w1)
    gx = torch.sqrt((h * h).sum(axis=(1, 2), keepdims=True) + 1e-6)
    nx = gx / (gx.mean(axis=-1, keepdims=True) + 1e-6)
    h = grn_g[None, None, None, :] * (h * nx) + grn_b[None, None, None, :] + h
    return x + h @ w2
```

```python
import re

REG_RE = re.compile(r'^(-|\|)?(abs\()?([vas])(\d+|\[(\d+):(\d+)\])')

def parse_reg(tok):
    t = tok.strip()
    t = t.lstrip('-').strip('|')
    if t in ('vcc',): return [('s', 106), ('s', 107)]
    if t == 'vcc_lo': return [('s', 106)]
    if t == 'vcc_hi': return [('s', 107)]
    if t == 'exec': return [('s', 126), ('s', 127)]
    if t == 'exec_lo': return [('s', 126)]
    if t == 'exec_hi': return [('s', 127)]
    if t == 'm0': return [('s', 124)]
    m = re.match(r'^([vas])(\d+)$', t)
    if m: return [(m.group(1), int(m.group(2)))]
    m = re.match(r'^([vas])\[(\d+):(\d+)\]$', t)
    if m: return [(m.group(1), i) for i in range(int(m.group(2)), int(m.group(3)) + 1)]
    return []

def split_ops(s):
    ops, depth, cur = [], 0, ''
    for ch in s:
        if ch in '[(': depth += 1
        if ch in '])': depth -= 1
        if ch == ',' and depth == 0:
            ops.append(cur.strip()); cur = ''
        else: cur += ch
    if cur.strip(): ops.append(cur.strip())
    out = []
    mods = []
    for o in ops:
        parts = o.split()
        out.append(parts[0]); mods += parts[1:]
    return out, mods

TRANS = ('v_exp_f32', 'v_rcp_f32', 'v_rsq_f32', 'v_sqrt_f32', 'v_log_f32', 'v_sin_f32', 'v_cos_f32')

class Ins:
    __slots__ = ('text', 'mn', 'ops', 'mods', 'defs', 'uses', 'kind', 'passes', 'srcC', 'comment')
    def __init__(self, text):
        self.text = text
        t = text.split(';')[0].strip()
        parts = t.split(None, 1)
        self.mn = parts[0]
        self.ops, self.mods = split_ops(parts[1]) if len(parts) > 1 else ([], [])
        self.defs, self.uses, self.passes, self.srcC = set(), set(), 0, set()
        mn, ops = self.mn, self.ops
        R = [parse_reg(o) for o in ops]
        def U(i):
            if i < len(R): self.uses.update(R[i])
        def D(i):
            if i < len(R): self.defs.update(R[i])
        if mn.startswith('v_mfma') or mn.startswith('v_smfmac'):
            self.kind = 'mfma'
            self.passes = 8 if '32x32' in mn else 4
            D(0); U(1); U(2)
            if mn.startswith('v_smfmac'):
                U(0); U(3); self.srcC = set(R[0])
            else:
                U(3); self.srcC = set(R[3])
        elif mn.startswith('v_cmp'):
            self.kind = 'valu'; D(0)
            for i in range(1, len(ops)): U(i)
        elif mn.startswith('v_readfirstlane') or mn.startswith('v_readlane'):
            self.kind = 'valu'; D(0)
            for i in range(1, len(ops)): U(i)
        elif mn.startswith('v_permlane') and 'swap' in mn:
            self.kind = 'valu'; D(0); D(1); U(0); U(1)
        elif mn.startswith('v_'):
            self.kind = 'valu'; D(0)
            for i in range(1, len(ops)): U(i)
            if mn.startswith(('v_fmac', 'v_pk_fmac', 'v_dot2c')) or '_dpp' in mn or 'v_writelane' in mn: U(0)
            if mn.startswith('v_cndmask') and len(ops) == 3: self.uses.update(parse_reg('vcc'))
            if mn.startswith(('v_add_co', 'v_sub_co', 'v_addc_co')): D(1)
        elif mn.startswith('ds_'):
            self.kind = 'ds'
            if mn.startswith(('ds_read', 'ds_bpermute', 'ds_permute', 'ds_swizzle')):
                D(0)
                for i in range(1, len(ops)): U(i)
            else:
                for i in range(len(ops)): U(i)
        elif mn.startswith(('buffer_', 'global_')):
            self.kind = 'vmem'
            is_lds = 'lds' in self.mods
            if 'load' in mn and not is_lds:
                D(0)
                for i in range(1, len(ops)): U(i)
            elif 'atomic' in mn and 'sc0' in self.mods:
                D(0)
                for i in range(len(ops)): U(i)
            else:
                for i in range(len(ops)): U(i)
            if is_lds: self.uses.add(('s', 124))
        elif mn.startswith('s_'):
            self.kind = 'salu'
            if mn in ('s_waitcnt', 's_nop', 's_barrier', 's_endpgm', 's_sleep', 's_setprio', 's_branch') or mn.startswith('s_cbranch'):
                pass
            elif mn.startswith(('s_cmp', 's_bitcmp')):
                for i in range(len(ops)): U(i)
            else:
                D(0)
                for i in range(1, len(ops)): U(i)
                if 'saveexec' in mn: self.defs.update(parse_reg('exec')); self.uses.update(parse_reg('exec'))
        else:
            raise ValueError('unknown instr ' + text)
    def states(self):
        if self.mn == 's_nop': return int(self.ops[0], 0) + 1
        return 1
    def is_trans(self): return self.mn.replace('_e32', '').replace('_e64', '') in TRANS
    def is_dpp(self): return '_dpp' in self.mn
    def is_permlane(self): return self.mn.startswith('v_permlane')
    def wide_store(self):
        return self.kind == 'vmem' and 'store' in self.mn and ('x3' in self.mn or 'x4' in self.mn)

def required_gap(p, c):
    need = 0
    pv = {r for r in p.defs if r[0] in 'va'}
    ps = {r for r in p.defs if r[0] == 's'}
    cu = c.uses; cd = c.defs
    if p.kind == 'valu':
        if pv & cu:
            if c.kind == 'mfma': need = max(need, 2)
            if c.is_dpp() or c.is_permlane(): need = max(need, 2)
            if c.mn.startswith(('v_readfirstlane', 'v_readlane')): need = max(need, 1)
            if p.is_trans() and c.kind in ('valu',) : need = max(need, 1)
        if c.is_dpp() and (pv & cd): need = max(need, 2) if (pv & cu) else need
        if ps & cu:
            if c.kind == 'valu': need = max(need, 2)
            if c.kind == 'vmem': need = max(need, 5)
            if c.mn.startswith(('v_readlane', 'v_writelane')): need = max(need, 4)
    if p.kind == 'mfma':
        d = pv
        n_other = 8 if p.passes == 4 else 12
        if c.kind == 'mfma':
            if d & c.srcC:
                same = (d == c.srcC) and (p.passes == c.passes)
                if not same: need = max(need, 6 if p.passes == 4 else 10)
            ab = cu - c.srcC
            if d & ab: need = max(need, n_other)
            if (d & cd) and not (d & c.srcC): need = max(need, n_other)
        else:
            if d & (cu | cd): need = max(need, n_other)
        if c.kind == 'valu' and (p.srcC & cd): need = max(need, 3 if p.passes == 4 else 7)
    if p.kind == 'salu' and ('s', 124) in p.defs and c.kind == 'vmem' and 'lds' in c.mods: need = max(need, 1)
    if p.wide_store() and c.kind == 'valu':
        data = set(parse_reg(p.ops[0])) if p.mn.startswith('buffer') else set(parse_reg(p.ops[1]))
        if data & cd: need = max(need, 2)
    return need

class Asm:
    def __init__(self):
        self.items = []
        self.vm = []
        self.lg = []
    def raw(self, s): self.items.append(s)
    def label(self, name): self.items.append(name + ':')
    def c(self, s): self.items.append('; ' + s)
    def __call__(self, text, tag=None):
        ins = Ins(text)
        self.items.append(ins)
        if ins.kind == 'vmem': self.vm.append(tag)
        elif ins.kind == 'ds': self.lg.append(tag)
        return ins
    def wait_vm(self, tag=None):
        if tag is None: n = 0
        else:
            idx = [i for i, t in enumerate(self.vm) if t == tag]
            if not idx: return
            n = len(self.vm) - 1 - idx[-1]
        n = min(n, 63)
        self('s_waitcnt vmcnt(%d)' % n)
        self.vm = self.vm[len(self.vm) - n:] if n else []
    def wait_lg(self, tag=None):
        if tag is None: n = 0
        else:
            idx = [i for i, t in enumerate(self.lg) if t == tag]
            if not idx: return
            n = len(self.lg) - 1 - idx[-1]
        n = min(n, 15)
        self('s_waitcnt lgkmcnt(%d)' % n)
        self.lg = self.lg[len(self.lg) - n:] if n else []
    def wait_all(self):
        self('s_waitcnt vmcnt(0) lgkmcnt(0)'); self.vm = []; self.lg = []
    def fix_hazards(self, window=24):
        out = []
        hist = []
        nins = 0
        for it in self.items:
            if isinstance(it, str):
                out.append(it); continue
            need = 0; dist = 0
            for p in reversed(hist[-window:]):
                g = required_gap(p, it)
                if g > dist: need = max(need, g - dist)
                dist += p.states()
                if dist > 20: break
            while need > 0:
                k = min(need, 16)
                nop = Ins('s_nop %d' % (k - 1)); out.append(nop); hist.append(nop); need -= k; nins += 1
            out.append(it); hist.append(it)
        self.items = out
        return nins
    def text(self):
        s = []
        for it in self.items:
            if isinstance(it, str):
                s.append(it if it.endswith(':') or it.startswith(('.', ';')) else '  ' + it)
            else: s.append('  ' + it.text)
        return '\n'.join(s) + '\n'
    def count(self):
        return sum(1 for it in self.items if not isinstance(it, str))
```

```python
import sys, math, struct
from asmlib import Asm

NAME = "standalone__modern_conv_block_slak__vision"
OPT = dict(debug=0, stamps=0)
for a in sys.argv[1:]:
    if '=' in a and not a.startswith('out='):
        k, v = a.split('='); OPT[k] = int(v)
OUT = [a[4:] for a in sys.argv[1:] if a.startswith('out=')]
OUT = OUT[0] if OUT else "cdna_kernels/%s.s" % NAME
DEBUG = OPT['debug']; STAMPS = OPT['stamps']

def f32(x): return struct.unpack('<I', struct.pack('<f', x))[0]
def hx(x): return '0x%08x' % (x & 0xffffffff)

C1 = -2.0 * math.log2(math.e) * math.sqrt(2.0 / math.pi)
C2 = C1 * 0.044715
AS = -((-C2) ** (1.0 / 3.0))
KK = C1 / AS

XS = 0;            XS_W = 18 * 54 * 16
DWS = 62208;       DWS_W = 1280
W1S = 67328;       W1S_W = 18432
STATS = 141056
YB = 0;            YP = 208
RING = 40960;      SETSZ = 49152
REM = 0
W2RAW = 90112;     W2RAW_W = 18432
W2S = 0
SFAC = 73728 + 0
BIASP = 75264
BIASF = 76800
REDB = 77312
LDS_BYTES = 163840
WS_PART = 0
WS_TOT = 0x80000
WS_DBG = 0x100000
NREP = 16
NRED = 24

sW = 22
SX, SDW, SW1, SW2, SOUT, SWS, SDBG, SG, SB = 24, 28, 32, 36, 40, 44, 48, 52, 56
sGY0, sGX0 = 60, 61
sT0, sT1, sT2, sT3, sT4, sT5 = 62, 63, 64, 65, 66, 67
sEX = 68
sMc4 = 70
sM14 = 72
sK = 74
sTY, sTX = 76, 77
sCnt = 78
sStamp = 80
def srd(b): return 's[%d:%d]' % (b, b + 3)
def sp(b): return 's[%d:%d]' % (b, b + 1)
def v(b, n=1): return 'v%d' % b if n == 1 else 'v[%d:%d]' % (b, b + n - 1)
def a_(b, n=1): return 'a%d' % b if n == 1 else 'a[%d:%d]' % (b, b + n - 1)

A = Asm()
I = A

nst = [0]
def stamp():
    if STAMPS:
        k = nst[0]; nst[0] += 1
        assert k < 10
        A.wait_lg()
        I('s_memrealtime %s' % sp(sStamp + 2 * k))
        I('s_waitcnt lgkmcnt(0)')

def barrier():
    I('s_barrier')

def prologue():
    vLane = 1
    I('s_cmp_ge_u32 s2, 256')
    I('s_cbranch_scc1 L_end')
    I('s_load_dwordx16 s[4:19], s[0:1], 0')
    I('s_load_dwordx2 s[20:21], s[0:1], 64')
    stamp()
    I('v_and_b32 v1, 63, v0')
    I('v_lshrrev_b32 v2, 6, v0')
    I('s_and_b32 s%d, s2, 7' % sT0)
    I('s_lshr_b32 s%d, s2, 3' % sT1)
    I('v_readfirstlane_b32 s%d, v2' % sW)
    I('s_lshr_b32 s%d, s%d, 1' % (sT2, sT0))
    I('s_lshl_b32 s%d, s%d, 2' % (sT2, sT2))
    I('s_lshr_b32 s%d, s%d, 3' % (sT3, sT1))
    I('s_add_u32 s%d, s%d, s%d' % (sTY, sT2, sT3))
    I('s_and_b32 s%d, s%d, 1' % (sT2, sT0))
    I('s_lshl_b32 s%d, s%d, 3' % (sT2, sT2))
    I('s_and_b32 s%d, s%d, 7' % (sT3, sT1))
    I('s_add_u32 s%d, s%d, s%d' % (sTX, sT2, sT3))
    I('s_mul_i32 s%d, s%d, 14' % (sGY0, sTY))
    I('s_sub_u32 s%d, s%d, 2' % (sGY0, sGY0))
    I('s_mul_i32 s%d, s%d, 14' % (sGX0, sTX))
    I('s_sub_u32 s%d, s%d, 2' % (sGX0, sGX0))
    I('v_mul_u32_u24 v3, 57, v1')
    I('v_lshrrev_b32 v3, 10, v3')
    I('v_mul_u32_u24 v4, 18, v3')
    I('v_sub_u32 v4, v1, v4')
    I('v_add_u32 v4, s%d, v4' % sGX0)
    I('s_mul_i32 s%d, s%d, 48' % (sT0, sW))
    I('v_mul_i32_i24 v5, 192, v4')
    I('v_lshl_add_u32 v5, v3, 4, v5')
    I('v_add_u32 v5, s%d, v5' % sT0)
    I('v_mov_b32 v6, 0x80000000')
    I('v_cmp_gt_u32 vcc, 224, v4')
    I('v_cndmask_b32 v2, v6, v5, vcc')
    I('v_mul_u32_u24 v3, 171, v1')
    I('v_lshrrev_b32 v3, 9, v3')
    I('v_mul_u32_u24 v4, 3, v3')
    I('v_sub_u32 v4, v1, v4')
    I('v_mul_u32_u24 v3, 192, v3')
    I('v_lshl_add_u32 v3, v4, 4, v3')
    I('v_add_u32 v3, s%d, v3' % sT0)
    I('v_add_u32 v4, 64, v1')
    I('v_mul_u32_u24 v5, 171, v4')
    I('v_lshrrev_b32 v5, 9, v5')
    I('v_mul_u32_u24 v7, 3, v5')
    I('v_sub_u32 v7, v4, v7')
    I('v_mul_u32_u24 v5, 192, v5')
    I('v_lshl_add_u32 v5, v7, 4, v5')
    I('v_add_u32 v5, s%d, v5' % sT0)
    I('v_cmp_gt_u32 vcc, 75, v4')
    I('v_cndmask_b32 v4, v6, v5, vcc')
    I('s_waitcnt lgkmcnt(0)')
    def mk(b, p, n):
        I('s_mov_b32 s%d, s%d' % (b, p)); I('s_and_b32 s%d, s%d, 0xffff' % (b + 1, p + 1))
        I('s_mov_b32 s%d, %s' % (b + 2, hx(n))); I('s_mov_b32 s%d, 0x20000' % (b + 3))
    mk(SDW, 6, 4800); mk(SX, 4, 9633792)
    I('s_mul_i32 s%d, s%d, %d' % (sT1, sW, DWS_W))
    I('s_add_u32 s%d, s%d, %d' % (sT1, sT1, DWS))
    I('s_mov_b32 m0, s%d' % sT1)
    I('s_add_u32 s%d, s%d, 1024' % (sT2, sT1))
    I('buffer_load_dwordx4 v3, %s, 0 offen lds' % srd(SDW), 'dw')
    I('s_mov_b32 m0, s%d' % sT2)
    I('s_mov_b32 exec_lo, 0xffff'); I('s_mov_b32 exec_hi, 0')
    I('buffer_load_dwordx4 v4, %s, 0 offen lds' % srd(SDW), 'dw')
    I('s_mov_b32 exec_lo, -1'); I('s_mov_b32 exec_hi, 0x003fffff')
    I('s_mul_i32 s%d, s%d, %d' % (sT1, sW, XS_W))
    I('s_mul_i32 s%d, s%d, 43008' % (sT2, sGY0))
    for r in range(18):
        I('s_mov_b32 m0, s%d' % sT1)
        if r < 2:
            I('s_cmp_lt_i32 s%d, 0' % sT2)
            I('s_cselect_b32 s%d, 2.0, s%d' % (sT3, sT2))
            so = sT3
        else:
            so = sT2
        I('buffer_load_dwordx4 v2, %s, s%d offen lds' % (srd(SX), so), 'x%d' % r)
        if r < 17:
            I('s_add_u32 s%d, s%d, 864' % (sT1, sT1))
            I('s_add_u32 s%d, s%d, 43008' % (sT2, sT2))
    I('s_mov_b64 exec, -1')
    mk(SW1, 8, 73728); mk(SWS, 20, 0x200000 if (DEBUG or STAMPS) == 0 else 0x8000000)
    for c in range(3):
        I('v_add_u32 v3, %d, v1' % (64 * c))
        I('v_mul_u32_u24 v4, 171, v3')
        I('v_lshrrev_b32 v4, 11, v4')
        I('v_mul_u32_u24 v5, 12, v4')
        I('v_sub_u32 v5, v3, v5')
        I('v_mul_u32_u24 v4, 768, v4')
        I('v_lshl_add_u32 v%d, v5, 4, v4' % (7 + c))
    for p in range(192): assert (p * 171) >> 11 == p // 12
    I('s_mul_i32 s%d, s%d, 192' % (sT2, sW))
    I('s_mul_i32 s%d, s%d, %d' % (sT1, sW, W1S_W))
    I('s_add_u32 s%d, s%d, %d' % (sT1, sT1, W1S))
    for G in range(6):
        for c in range(3):
            I('s_mov_b32 m0, s%d' % sT1)
            I('s_add_u32 s%d, s%d, 1024' % (sT1, sT1))
            I('buffer_load_dwordx4 v%d, %s, s%d offen lds' % (7 + c, srd(SW1), sT2), 'w1')
        if G < 5: I('s_add_u32 s%d, s%d, %d' % (sT2, sT2, 16 * 768))
    mk(SDBG, 18, 256); mk(SW2, 10, 73728); mk(SOUT, 16, 9633792); mk(SG, 12, 768); mk(SB, 14, 768)

AC = 32
vIDX = 80
BH = 84
BV = 108
DC = 132
TS = 216
vH, vV1, vV2, vStW, vStR, vY = 16, 17, 18, 19, 20, 21
def ac(o, f): return AC + (o * 4 + f) * 4
def dc(t, o): return DC + (t * 3 + o) * 4

def conv_setup():
    I('v_and_b32 v3, 15, v1')
    I('v_lshrrev_b32 v4, 4, v1')
    I('s_mul_i32 s%d, s%d, %d' % (sT0, sW, XS_W))
    I('v_add_u32 v5, v3, v4')
    I('v_lshlrev_b32 v5, 4, v5')
    I('v_add_u32 v%d, s%d, v5' % (vH, sT0))
    I('v_mul_u32_u24 v5, 54, v4')
    I('v_add3_u32 v5, v5, v3, 4')
    I('v_lshlrev_b32 v5, 4, v5')
    I('v_add_u32 v%d, s%d, v5' % (vV1, sT0))
    I('v_and_b32 v6, 1, v4')
    I('v_add_u32 v5, 4, v6')
    I('v_mul_u32_u24 v5, 54, v5')
    I('v_add3_u32 v5, v5, v3, 4')
    I('v_lshlrev_b32 v5, 4, v5')
    I('v_add_u32 v%d, s%d, v5' % (vV2, sT0))
    I('v_lshrrev_b32 v7, 1, v4')
    I('v_lshl_add_u32 v5, v7, 4, v3')
    I('v_lshlrev_b32 v5, 5, v5')
    I('v_add_u32 v%d, %d, v5' % (vStR, STATS))
    I('s_lshl_b32 s%d, s%d, 3' % (sT1, sW))
    I('v_lshl_add_u32 v5, v6, 2, v%d' % vStR)
    I('v_add_u32 v%d, s%d, v5' % (vStW, sT1))
    I('v_mul_u32_u24 v5, 14, v7')
    I('v_add_u32 v5, v5, v3')
    I('v_mul_u32_u24 v5, %d, v5' % YP)
    I('v_lshl_add_u32 v5, v6, 3, v5')
    I('s_mul_i32 s%d, s%d, 48' % (sT1, sW))
    I('v_add_u32 v%d, s%d, v5' % (vY, sT1))
    I('s_mov_b32 s%d, 0x0f0f0f0f' % sMc4); I('s_mov_b32 s%d, 0x0f0f0f0f' % (sMc4 + 1))
    I('s_mov_b32 s%d, 0x3fff3fff' % sM14); I('s_mov_b32 s%d, 0x3fff3fff' % (sM14 + 1))
    I('v_lshrrev_b32 v8, 3, v3')
    I('v_and_b32 v9, 7, v3')
    I('s_mul_i32 s%d, s%d, %d' % (sT1, sW, DWS_W))
    I('s_add_u32 s%d, s%d, %d' % (sT1, sT1, DWS))
    I('v_lshl_add_u32 v9, v9, 1, s%d' % sT1)
    I('v_add_u32 v10, %d, v9' % (75 * 16))
    I('v_and_b32 v11, 3, v3')
    I('v_mul_u32_u24 v%d, 0x5555, v11' % vIDX)
    I('v_lshrrev_b32 v11, 1, v4')
    I('v_and_b32 v12, 1, v4')
    for f in range(4):
        for hlf in range(2):
            dst = 22 + f * 2 + hlf
            if f < 3:
                I('v_sub_u32 v13, v11, v8')
                I('v_add_u32 v13, %d, v13' % (2 * f))
                I('v_mul_i32_i24 v14, 5, v13')
                I('v_lshl_add_u32 v14, v12, 1, v14')
                if hlf: I('v_add_u32 v14, 1, v14')
            else:
                I('v_lshlrev_b32 v13, 1, v4')
                I('v_sub_u32 v13, v13, v8')
                if hlf: I('v_add_u32 v13, 1, v13')
                I('v_mul_i32_i24 v14, 5, v13')
                I('v_add_u32 v14, 4, v14')
            I('v_mul_i32_i24 v14, 48, v14')
            I('v_add_u32 v14, v9, v14')
            I('v_cmp_gt_u32 vcc, 5, v13')
            I('v_cndmask_b32 v%d, v10, v14, vcc' % dst)

def clears():
    I('v_mov_b32 v12, -1'); I('v_mov_b32 v13, -1'); I('v_mov_b32 v14, -1'); I('v_mov_b32 v15, -1')
    I('s_mul_i32 s%d, s2, 1536' % sT1)
    I('s_mul_i32 s%d, s%d, 384' % (sT2, sW))
    I('s_add_u32 s%d, s%d, s%d' % (sT1, sT1, sT2))
    I('v_lshlrev_b32 v3, 4, v1')
    I('v_add_u32 v3, s%d, v3' % sT1)
    I('s_mov_b32 exec_lo, 0x00ffffff'); I('s_mov_b32 exec_hi, 0')
    I('buffer_store_dwordx4 v[12:15], v3, %s, 0 offen sc1' % srd(SWS), 'clr')
    I('s_cmp_ge_u32 s2, %d' % NREP)
    I('s_cbranch_scc1 L_noclear')
    I('v_add_u32 v3, %d, v3' % WS_TOT)
    A.raw('buffer_store_dwordx4 v[12:15], v3, %s, 0 offen sc1' % srd(SWS))
    A.label('L_noclear')
    I('s_mov_b64 exec, -1')

def conv():
    A.wait_vm('dw')
    for o in range(3):
        for f in range(4):
            for hlf in range(2):
                I('ds_read_u16 v%d, v%d offset:%d' % (BH + (o * 4 + f) * 2 + hlf, 22 + f * 2 + hlf, 16 * o), 'dwr')
    A.wait_lg('dwr')
    for o in range(3):
        for f in range(4):
            for hlf in range(2):
                src = BH + (o * 4 + f) * 2 + hlf
                I('v_cndmask_b32 v%d, 0, v%d, %s' % (ac(o, f) + 2 * hlf, src, sp(sMc4)))
                I('v_cndmask_b32 v%d, v%d, 0, %s' % (ac(o, f) + 2 * hlf + 1, src, sp(sMc4)))
    stamp()
    def stats(t):
        s0, q0 = TS, TS + 2
        I('v_pk_add_f32 %s, %s, %s' % (v(s0, 2), v(dc(t, 0), 2), v(dc(t, 0) + 2, 2)))
        I('v_pk_mul_f32 %s, %s, %s' % (v(q0, 2), v(dc(t, 0), 2), v(dc(t, 0), 2)))
        rest = [dc(t, 0) + 2, dc(t, 1), dc(t, 1) + 2, dc(t, 2), dc(t, 2) + 2]
        for k, r in enumerate(rest):
            if k > 0: I('v_pk_add_f32 %s, %s, %s' % (v(s0, 2), v(s0, 2), v(r, 2)))
            I('v_pk_fma_f32 %s, %s, %s, %s' % (v(q0, 2), v(r, 2), v(r, 2), v(q0, 2)))
        I('v_add_f32 v%d, v%d, v%d' % (s0, s0, s0 + 1))
        I('v_add_f32 v%d, v%d, v%d' % (q0, q0, q0 + 1))
        I('v_permlane16_swap_b32 v%d, v%d' % (s0, q0))
        I('v_add_f32 v%d, v%d, v%d' % (s0, s0, q0))
        I('ds_write_b32 v%d, v%d offset:%d' % (vStW, s0, 1024 * t), 'stw')
    for rho in range(0, 18, 2):
        tn = rho // 2
        A.wait_vm('x%d' % (rho + 1))
        if rho == 16: clears()
        for o in range(3):
            off = 16 * (54 * rho + 18 * o)
            I('ds_read_b128 %s, v%d offset:%d' % (v(BH + 8 * o, 4), vH, off), 'h%d' % o)
            I('ds_read_b128 %s, v%d offset:%d' % (v(BH + 8 * o + 4, 4), vH, off + 864), 'h%d' % o)
        if rho >= 4:
            for o in range(3):
                off = 16 * (54 * (rho - 4) + 18 * o)
                I('ds_read_b128 %s, v%d offset:%d' % (v(BV + 8 * o, 4), vV1, off), 'v%d' % o)
                I('ds_read_b128 %s, v%d offset:%d' % (v(BV + 8 * o + 4, 4), vV2, off), 'v%d' % o)
        if tn <= 6:
            for o in range(3):
                I('v_mov_b64 %s, 0' % v(dc(tn, o), 2)); I('v_mov_b64 %s, 0' % v(dc(tn, o) + 2, 2))
        if tn - 3 >= 0: stats(tn - 3)
        for o in range(3):
            A.wait_lg('h%d' % o)
            for f in range(3):
                t = tn - f
                if 0 <= t <= 6:
                    I('v_smfmac_f32_16x16x64_bf16 %s, %s, %s, v%d' % (v(dc(t, o), 4), v(ac(o, f), 4), v(BH + 8 * o, 8), vIDX))
        if rho >= 4:
            for o in range(3):
                A.wait_lg('v%d' % o)
                I('v_smfmac_f32_16x16x64_bf16 %s, %s, %s, v%d' % (v(dc(tn - 2, o), 4), v(ac(o, 3), 4), v(BV + 8 * o, 8), vIDX))
    stats(6)
    stamp()

W1F = 32
def w1f(t, kc): return W1F + (t * 6 + kc) * 4
vW1 = 22
def w1_reads():
    I('v_lshrrev_b32 v3, 4, v1')
    I('v_bfe_u32 v4, v1, 2, 2')
    I('v_and_b32 v5, 3, v1')
    I('v_lshrrev_b32 v6, 1, v3')
    I('v_lshl_add_u32 v6, v6, 3, v4')
    I('v_mul_u32_u24 v6, 192, v6')
    I('v_and_b32 v7, 1, v3')
    I('v_lshl_add_u32 v6, v7, 5, v6')
    I('v_lshl_add_u32 v6, v5, 3, v6')
    I('s_mul_i32 s%d, s%d, %d' % (sT1, sW, W1S_W))
    I('s_add_u32 s%d, s%d, %d' % (sT1, sT1, W1S))
    I('v_add_u32 v%d, s%d, v6' % (vW1, sT1))
    A.wait_vm()
    for t in range(3):
        for kc in range(6):
            off = kc * 3072 + t * 64
            I('ds_read_b64_tr_b16 %s, v%d offset:%d' % (v(w1f(t, kc), 2), vW1, off), 'w1r')
            I('ds_read_b64_tr_b16 %s, v%d offset:%d' % (v(w1f(t, kc) + 2, 2), vW1, off + 768), 'w1r')

def layernorm():
    A.wait_lg()
    barrier()
    R = 104
    inv96 = hx(f32(1.0 / 96.0))
    I('s_mov_b32 s%d, %s' % (sT0, inv96))
    I('s_mov_b32 s%d, %s' % (sT1, hx(f32(1e-5))))
    I('s_mov_b32 s%d, %s' % (sT2, hx(f32(AS))))
    groups = [(0, 1, 2), (3, 4, 5), (6,)]
    for grp in groups:
        for k, t in enumerate(grp):
            I('ds_read_b128 %s, v%d offset:%d' % (v(R + 8 * k, 4), vStR, 1024 * t), 'st%d' % t)
            I('ds_read_b128 %s, v%d offset:%d' % (v(R + 8 * k + 4, 4), vStR, 1024 * t + 16), 'st%d' % t)
        for k, t in enumerate(grp):
            r = R + 8 * k
            A.wait_lg('st%d' % t)
            I('v_pk_add_f32 %s, %s, %s' % (v(r, 2), v(r, 2), v(r + 2, 2)))
            I('v_pk_add_f32 %s, %s, %s' % (v(r + 4, 2), v(r + 4, 2), v(r + 6, 2)))
            I('v_pk_add_f32 %s, %s, %s' % (v(r, 2), v(r, 2), v(r + 4, 2)))
            I('v_mul_f32 v%d, s%d, v%d' % (r, sT0, r))
            I('v_mul_f32 v%d, s%d, v%d' % (r + 1, sT0, r + 1))
            I('v_fma_f32 v%d, -v%d, v%d, v%d' % (r + 1, r, r, r + 1))
            I('v_max_f32 v%d, 0, v%d' % (r + 1, r + 1))
            I('v_add_f32 v%d, s%d, v%d' % (r + 1, sT1, r + 1))
            I('v_rsq_f32 v%d, v%d' % (r + 1, r + 1))
            I('v_mul_f32 v%d, s%d, v%d' % (r + 2, sT2, r + 1))
            I('v_mul_f32 v%d, -v%d, v%d' % (r + 3, r, r + 2))
        for k, t in enumerate(grp):
            r = R + 8 * k
            for o in range(3):
                d = dc(t, o)
                for hh in (0, 2):
                    I('v_pk_fma_f32 %s, %s, %s, %s op_sel:[0,0,1] op_sel_hi:[1,0,1]' % (v(d + hh, 2), v(d + hh, 2), v(r + 2, 2), v(r + 2, 2)))
                I('v_cvt_pk_bf16_f32 v%d, v%d, v%d' % (d, d, d + 1))
                I('v_cvt_pk_bf16_f32 v%d, v%d, v%d' % (d + 1, d + 2, d + 3))
            I('s_mov_b64 exec, %s' % sp(sM14))
            for o in range(3):
                I('ds_write_b64 v%d, %s offset:%d' % (vY, v(dc(t, o), 2), YB + 28 * YP * t + 16 * o), 'yw')
            I('s_mov_b64 exec, -1')

ACC = [104, 120]; ACC3 = 172
TT = 136; PP = 152; SQ = 160
YA = [192, 216]
HM = 0; HR = 144
vYr, vYrem = 2, 3
vHW = [[4, 5], [6, 7]]
vHR = [8, 9]
vRemW, vRemR = 10, 11
def phaseB_setup():
    I('v_and_b32 v12, 31, v1')
    I('v_lshrrev_b32 v13, 5, v1')
    I('v_and_b32 v14, 0x13, v12')
    I('v_and_b32 v15, 4, v12'); I('v_lshl_or_b32 v14, v15, 1, v14')
    I('v_and_b32 v15, 8, v12'); I('v_lshrrev_b32 v15, 1, v15'); I('v_or_b32 v14, v14, v15')
    I('v_mul_u32_u24 v14, %d, v14' % YP)
    I('v_lshl_add_u32 v%d, v13, 4, v14' % vYr)
    I('v_bfe_u32 v14, v12, 2, 1'); I('v_and_b32 v15, 1, v12')
    I('v_lshl_add_u32 v14, v14, 1, v15')
    I('v_add_u32 v14, 192, v14')
    I('v_mul_u32_u24 v14, %d, v14' % YP)
    I('v_lshl_add_u32 v%d, v13, 4, v14' % vYrem)
    I('s_mul_i32 s%d, s%d, %d' % (sT0, sW, 96 * 128))
    I('s_add_u32 s%d, s%d, %d' % (sT0, sT0, RING))
    I('v_lshlrev_b32 v14, 7, v12')
    I('v_add_u32 v14, s%d, v14' % sT0)
    I('v_and_b32 v15, 7, v12')
    I('v_xor_b32 v15, v15, v13')
    for jp in range(2):
        for s in range(2):
            I('v_xor_b32 v16, %d, v15' % (4 * jp + 2 * s))
            I('v_lshl_add_u32 v%d, v16, 4, v14' % vHW[jp][s])
    I('s_mul_i32 s%d, s%d, %d' % (sT0, sW, 96 * 8))
    I('v_lshlrev_b32 v14, 3, v12')
    I('v_lshl_add_u32 v14, v13, 2, v14')
    I('v_add_u32 v%d, s%d, v14' % (vRemW, sT0))
    if REM: I('v_add_u32 v%d, %d, v%d' % (vRemW, REM, vRemW))
    I('v_lshrrev_b32 v12, 4, v1')
    I('v_bfe_u32 v13, v1, 2, 2')
    I('v_and_b32 v14, 3, v1')
    I('v_lshrrev_b32 v15, 1, v12'); I('v_lshlrev_b32 v15, 4, v15')
    I('v_and_b32 v16, 1, v12'); I('v_lshl_add_u32 v16, v16, 2, v13')
    I('v_add_u32 v15, v15, v16')
    I('v_lshlrev_b32 v%d, 3, v15' % vRemR)
    if REM: I('v_add_u32 v%d, %d, v%d' % (vRemR, REM, vRemR))
    I('s_lshl_b32 s%d, s%d, 1' % (sT0, sW))
    I('v_lshrrev_b32 v17, 1, v14')
    I('v_add_u32 v17, s%d, v17' % sT0)
    I('v_xor_b32 v17, v17, v16')
    I('v_lshlrev_b32 v15, 7, v15')
    I('v_lshl_add_u32 v15, v17, 4, v15')
    I('v_and_b32 v14, 1, v14')
    I('v_lshl_add_u32 v15, v14, 3, v15')
    I('v_add_u32 v%d, %d, v15' % (vHR[0], RING))
    I('v_add_u32 v%d, %d, v15' % (vHR[1], RING + SETSZ))
    I('s_mov_b32 s%d, %s' % (sK, hx(f32(KK)))); I('s_mov_b32 s%d, %s' % (sK + 1, hx(f32(KK))))
    for t in range(3):
        I('v_mov_b64 %s, 0' % v(SQ + 4 * t, 2)); I('v_mov_b64 %s, 0' % v(SQ + 4 * t + 2, 2))

def yreads(j, buf):
    for kc in range(6):
        if j < 6: I('ds_read_b128 %s, v%d offset:%d' % (a_(YA[buf] + 4 * kc, 4), vYr, YB + j * 32 * YP + 32 * kc), 'y%d' % j)
        else:     I('ds_read_b128 %s, v%d offset:%d' % (a_(YA[buf] + 4 * kc, 4), vYrem, YB + 32 * kc), 'y%d' % j)

def mfma1(acc, buf, t, kc):
    c = '0' if kc == 0 else v(acc, 16)
    return 'v_mfma_f32_32x32x16_bf16 %s, %s, %s, %s' % (v(acc, 16), a_(YA[buf] + 4 * kc, 4), v(w1f(t, kc), 4), c)

def gelu_unit(acc, t, npair, mf, tail):
    n = 2 * npair
    for i in range(npair):
        I('v_pk_fma_f32 %s, %s, %s, %s' % (v(TT + 2 * i, 2), v(acc + 2 * i, 2), v(acc + 2 * i, 2), sp(sK)))
    for i in range(npair):
        I('v_pk_mul_f32 %s, %s, %s' % (v(TT + 2 * i, 2), v(acc + 2 * i, 2), v(TT + 2 * i, 2)))
    m1, m2 = mf[:len(mf) // 2], mf[len(mf) // 2:]
    def trans(op, ms):
        ms = list(ms)
        for i in range(n):
            if ms and i % 5 == 0: I(ms.pop(0))
            I('%s v%d, v%d' % (op, TT + i, TT + i))
        assert not ms or n < 16
        return ms
    left = trans('v_exp_f32', m1)
    for i in range(npair):
        I('v_pk_add_f32 %s, %s, 1.0 op_sel_hi:[1,0]' % (v(TT + 2 * i, 2), v(TT + 2 * i, 2)))
    left += trans('v_rcp_f32', m2)
    for i in range(npair):
        I('v_pk_mul_f32 %s, %s, %s' % (v(TT + 2 * i, 2), v(acc + 2 * i, 2), v(TT + 2 * i, 2)))
    for i in range(npair):
        s = SQ + 4 * t + 2 * (i & 1)
        I('v_pk_fma_f32 %s, %s, %s, %s' % (v(s, 2), v(TT + 2 * i, 2), v(TT + 2 * i, 2), v(s, 2)))
    for i in range(npair):
        I('v_cvt_pk_bf16_f32 v%d, v%d, v%d' % (PP + i, TT + 2 * i, TT + 2 * i + 1))
    for m in left: I(m)
    tail()

def hreads(setidx, sub, Ts):
    for T in Ts:
        for e2 in range(2):
            I('ds_read_b64_tr_b16 %s, v%d offset:%d' % (a_(HM + sub * 48 + T * 4 + 2 * e2, 2), vHR[setidx], T * 4096 + e2 * 1024), 'hr')

def phaseB():
    yreads(0, 0)
    A.wait_lg('y0')
    for kc in range(6): I(mfma1(ACC[0], 0, 0, kc))
    units = [(j, t) for j in range(6) for t in range(3)]
    for u, (j, t) in enumerate(units):
        acc = ACC[u & 1]
        if u + 1 < len(units): jn, tn_ = units[u + 1]
        else: jn, tn_ = 6, 0
        nacc = ACC[(u + 1) & 1]
        mf = [mfma1(nacc, jn & 1, tn_, kc) for kc in range(6)]
        i = j // 2; jp = j & 1
        if t == 0:
            pass
        def tail(u=u, j=j, t=t, i=i, jp=jp):
            st = i & 1
            I('ds_write_b128 v%d, %s offset:%d' % (vHW[jp][0], v(PP, 4), t * 4096 + st * SETSZ), 'hw')
            I('ds_write_b128 v%d, %s offset:%d' % (vHW[jp][1], v(PP + 4, 4), t * 4096 + st * SETSZ), 'hw')
            if t == 0: yreads(j + 1, (j + 1) & 1)
            if i >= 1:
                k = 3 * jp + t
                hreads((i - 1) & 1, i - 1, (2 * k, 2 * k + 1))
            if t == 1:
                A.wait_lg('y%d' % (j + 1))
            if jp == 1 and t == 2:
                A.wait_lg()
                barrier()
        gelu_unit(acc, t, 8, mf, tail)
        if u == 5: stamp()
    racc = [ACC[0], ACC[1], ACC3]
    for t in (1, 2):
        for kc in range(6): I(mfma1(racc[t], 0, t, kc))
    hreads(0, 2, range(0, 6))
    for t in range(3):
        def tail(t=t):
            I('ds_write_b32 v%d, v%d offset:%d' % (vRemW, PP, 256 * t), 'rw')
        gelu_unit(racc[t], t, 1, [], tail)
    hreads(0, 2, range(6, 12))

def publish():
    for t in range(3):
        s = SQ + 4 * t
        I('v_pk_add_f32 %s, %s, %s' % (v(s, 2), v(s, 2), v(s + 2, 2)))
        I('v_add_f32 v%d, v%d, v%d' % (s, s, s + 1))
    I('v_mov_b32 v%d, v%d' % (SQ + 9, SQ + 8))
    I('v_permlane32_swap_b32 v%d, v%d' % (SQ, SQ + 4))
    I('v_permlane32_swap_b32 v%d, v%d' % (SQ + 8, SQ + 9))
    I('v_add_f32 v%d, v%d, v%d' % (SQ, SQ, SQ + 4))
    I('v_add_f32 v%d, v%d, v%d' % (SQ + 8, SQ + 8, SQ + 9))
    I('v_and_b32 v%d, 0x7fffffff, v%d' % (TT, SQ))
    I('v_and_b32 v%d, 0x7fffffff, v%d' % (TT + 4, SQ + 8))
    for b in (TT, TT + 4):
        for k in (1, 2, 3):
            I('v_mov_b32_dpp v%d, v%d quad_perm:[%d,%d,%d,%d] row_mask:0xf bank_mask:0xf' % (b + k, b, k, k, k, k))
    I('s_mul_i32 s%d, s2, 1536' % sT0)
    I('s_mul_i32 s%d, s%d, 384' % (sT1, sW))
    I('s_add_u32 s%d, s%d, s%d' % (sT0, sT0, sT1))
    I('v_lshlrev_b32 v12, 2, v1')
    I('v_add_u32 v12, s%d, v12' % sT0)
    I('s_mov_b32 exec_lo, 0x11111111'); I('s_mov_b32 exec_hi, 0x11111111')
    I('buffer_store_dwordx4 %s, v12, %s, 0 offen sc1' % (v(TT, 4), srd(SWS)), 'pub')
    I('s_mov_b32 exec_hi, 0')
    I('buffer_store_dwordx4 %s, v12, %s, 0 offen offset:256 sc1' % (v(TT + 4, 4), srd(SWS)), 'pub')
    I('s_mov_b64 exec, -1')

def arrive():
    I('s_cmp_lg_u32 s%d, 0' % sW)
    I('s_cbranch_scc1 L_noarrive')
    I('s_and_b32 s%d, s2, 3' % sT0)
    I('s_lshl_b32 s%d, s%d, 6' % (sT0, sT0))
    I('v_mov_b32 v12, s%d' % sT0)
    I('v_mov_b32 v13, 1')
    I('s_mov_b64 exec, 1')
    A.raw('buffer_atomic_add v13, v12, %s, 0 offen' % srd(SDBG))
    I('s_mov_b64 exec, -1')
    A.label('L_noarrive')

SPIN = 400000
def check_cleared():
    I('v_lshlrev_b32 v12, 6, v1')
    I('s_mov_b32 s%d, %d' % (sCnt, SPIN))
    I('s_mov_b64 exec, 15')
    A.label('L_chk')
    A.raw('buffer_load_dword v13, v12, %s, 0 offen sc1' % srd(SDBG))
    A.raw('s_waitcnt vmcnt(0)')
    I('v_cmp_ne_u32 vcc, 64, v13')
    I('s_cbranch_vccz L_chk_done')
    I('s_sleep 1')
    I('s_sub_u32 s%d, s%d, 1' % (sCnt, sCnt))
    I('s_cmp_lg_u32 s%d, 0' % sCnt)
    I('s_cbranch_scc1 L_chk')
    A.label('L_chk_done')
    I('s_mov_b64 exec, -1')
    A.vm = []

def reducer():
    I('s_cmp_ge_u32 s2, %d' % NRED)
    I('s_cbranch_scc1 L_nored')
    B = 32
    I('v_lshrrev_b32 v12, 2, v1')
    I('s_lshl_b32 s%d, s%d, 6' % (sT0, sW))
    I('v_add_u32 v12, s%d, v12' % sT0)
    I('v_mul_u32_u24 v12, 1536, v12')
    I('v_and_b32 v13, 3, v1')
    I('v_lshlrev_b32 v13, 4, v13')
    I('s_lshl_b32 s%d, s2, 6' % sT1)
    I('v_add3_u32 v12, v12, v13, s%d' % sT1)
    I('s_mov_b32 s%d, %d' % (sT2, 16 * 1536)); I('s_mov_b32 s%d, %d' % (sT3, 32 * 1536)); I('s_mov_b32 s%d, %d' % (sT4, 48 * 1536))
    I('s_mov_b32 s%d, %d' % (sCnt, SPIN))
    A.label('L_red')
    for k, so in enumerate(['0', 's%d' % sT2, 's%d' % sT3, 's%d' % sT4]):
        A.raw('buffer_load_dwordx4 %s, v12, %s, %s offen sc1' % (v(B + 4 * k, 4), srd(SWS), so))
    A.raw('s_waitcnt vmcnt(0)')
    I('v_max3_u32 v14, v%d, v%d, v%d' % (B, B + 1, B + 2))
    for k in range(3, 15, 2): I('v_max3_u32 v14, v14, v%d, v%d' % (B + k, B + k + 1))
    I('v_max_u32 v14, v14, v%d' % (B + 15))
    I('v_cmp_eq_u32 vcc, -1, v14')
    I('s_cbranch_vccz L_red_got')
    I('s_sub_u32 s%d, s%d, 1' % (sCnt, sCnt))
    I('s_cmp_lg_u32 s%d, 0' % sCnt)
    I('s_cbranch_scc1 L_red')
    A.label('L_red_got')
    A.vm = []
    for k in (0, 2):
        I('v_pk_add_f32 %s, %s, %s' % (v(B + k, 2), v(B + k, 2), v(B + 4 + k, 2)))
        I('v_pk_add_f32 %s, %s, %s' % (v(B + 8 + k, 2), v(B + 8 + k, 2), v(B + 12 + k, 2)))
    for k in (0, 2):
        I('v_pk_add_f32 %s, %s, %s' % (v(B + k, 2), v(B + k, 2), v(B + 8 + k, 2)))
    for ror in (4, 8):
        for k in range(4): I('v_add_f32_dpp v%d, v%d, v%d row_ror:%d row_mask:0xf bank_mask:0xf' % (B + k, B + k, B + k, ror))
    for sw in ('16', '32'):
        for k in range(4): I('v_mov_b32 v%d, v%d' % (B + 4 + k, B + k))
        for k in range(4): I('v_permlane%s_swap_b32 v%d, v%d' % (sw, B + 4 + k, B + k))
        for k in range(4): I('v_add_f32 v%d, v%d, v%d' % (B + k, B + k, B + 4 + k))
    I('v_lshlrev_b32 v13, 4, v0')
    I('v_lshrrev_b32 v14, 6, v0'); I('v_and_b32 v13, 0x30, v13'); I('v_lshl_add_u32 v13, v14, 6, v13')
    I('v_add_u32 v13, %d, v13' % REDB)
    I('s_mov_b64 exec, 15')
    I('ds_write_b128 v13, %s' % v(B, 4))
    I('s_mov_b64 exec, -1')
    A.wait_lg()
    barrier()
    I('s_cmp_lg_u32 s%d, 0' % sW)
    I('s_cbranch_scc1 L_nored')
    I('v_and_b32 v13, 3, v1'); I('v_lshlrev_b32 v13, 4, v13'); I('v_add_u32 v13, %d, v13' % REDB)
    for k in range(4): I('ds_read_b128 %s, v13 offset:%d' % (v(B + 4 * k, 4), 64 * k))
    A.wait_lg()
    for k in (0, 2):
        I('v_pk_add_f32 %s, %s, %s' % (v(B + k, 2), v(B + k, 2), v(B + 4 + k, 2)))
        I('v_pk_add_f32 %s, %s, %s' % (v(B + 8 + k, 2), v(B + 8 + k, 2), v(B + 12 + k, 2)))
    for k in (0, 2):
        I('v_pk_add_f32 %s, %s, %s' % (v(B + k, 2), v(B + k, 2), v(B + 8 + k, 2)))
    for k in range(4): I('v_and_b32 v%d, 0x7fffffff, v%d' % (B + k, B + k))
    I('v_lshrrev_b32 v12, 2, v1')
    I('v_mul_u32_u24 v12, 1536, v12')
    I('v_and_b32 v13, 3, v1'); I('v_lshlrev_b32 v13, 4, v13')
    I('s_lshl_b32 s%d, s2, 6' % sT1)
    I('s_add_u32 s%d, s%d, %d' % (sT1, sT1, WS_TOT))
    I('v_add3_u32 v12, v12, v13, s%d' % sT1)
    A.raw('buffer_store_dwordx4 %s, v12, %s, 0 offen sc1' % (v(B, 4), srd(SWS)))
    A.label('L_nored')
    I('s_nop 1')

W2F = 32
def w2f(cl, T2, b): return W2F + ((cl * 3 + T2) * 2 + b) * 8
CA = 176
def ca(i, T2): return CA + (i * 3 + T2) * 8
CR = CA + 72
vOut = [2, 3, 4, 5]
vAr, vArRem, vW2sW, vFac, vPoll, vPoll2, vSw = 6, 7, 8, 9, 10, 11, 12
vTot = 16; vG = 24
FAC = 16

def wait_work():
    I('s_mul_i32 s%d, s%d, %d' % (sT0, sW, W2RAW_W))
    I('s_add_u32 s%d, s%d, %d' % (sT1, sT0, W2RAW))
    I('v_lshlrev_b32 v13, 4, v1')
    for k in range(18):
        I('s_mov_b32 m0, s%d' % sT1)
        I('buffer_load_dwordx4 v13, %s, s%d offen lds' % (srd(SW2), sT0), 'w2')
        if k < 17:
            I('s_add_u32 s%d, s%d, 1024' % (sT1, sT1)); I('s_add_u32 s%d, s%d, 1024' % (sT0, sT0))
    I('v_and_b32 v13, 15, v1')
    I('v_lshrrev_b32 v14, 4, v1')
    I('s_mul_i32 s%d, s%d, 14' % (sT2, sTY)); I('s_mul_i32 s%d, s%d, 14' % (sT3, sTX))
    I('s_mul_i32 s%d, s%d, 224' % (sT2, sT2)); I('s_add_u32 s%d, s%d, s%d' % (sT2, sT2, sT3))
    I('s_mul_i32 s%d, s%d, 192' % (sT2, sT2))
    I('s_lshl_b32 s%d, s%d, 4' % (sT3, sW))
    for i in range(4):
        if i < 3:
            I('v_add_u32 v15, s%d, v13' % sT3)
            if i: I('v_add_u32 v15, %d, v15' % (64 * i))
        else:
            I('v_and_b32 v15, 3, v13'); I('v_add_u32 v15, 192, v15')
        I('v_mul_u32_u24 v16, 4682, v15'); I('v_lshrrev_b32 v16, 16, v16')
        I('v_mul_u32_u24 v17, 14, v16'); I('v_sub_u32 v17, v15, v17')
        I('v_mul_u32_u24 v16, 224, v16'); I('v_add_u32 v16, v16, v17')
        I('v_mul_u32_u24 v16, 192, v16')
        I('v_lshl_add_u32 v16, v14, 4, v16')
        I('v_add_u32 v%d, s%d, v16' % (vOut[i], sT2))
    for p in range(208): assert (p * 4682) >> 16 == p // 14
    I('s_min_u32 s%d, s%d, 2' % (sT4, sW))
    I('s_lshl_b32 s%d, s%d, 6' % (sT5, sT4))
    I('v_add_u32 v%d, s%d, v%d' % (vOut[3], sT5, vOut[3]))
    for i in range(3):
        for T2 in range(3):
            I('buffer_load_dwordx4 %s, v%d, %s, 0 offen offset:%d' % (v(ca(i, T2) + 4, 4), vOut[i], srd(SX), 64 * T2), 'xr')
    I('buffer_load_dwordx4 %s, v%d, %s, 0 offen' % (v(CR + 4, 4), vOut[3], srd(SX)), 'xr')
    I('v_lshlrev_b32 v15, 3, v1')
    I('buffer_load_dwordx2 %s, v15, %s, 0 offen' % (v(vG + 2, 2), srd(SG)), 'g')
    I('buffer_load_dwordx2 %s, v15, %s, 0 offen offset:512' % (v(vG + 6, 2), srd(SG)), 'g')
    I('v_lshrrev_b32 v15, 1, v14'); I('v_lshlrev_b32 v15, 4, v15')
    I('v_and_b32 v16, 1, v14'); I('v_lshl_add_u32 v15, v16, 2, v15')
    I('s_mul_i32 s%d, s%d, 96' % (sT3, sW))
    I('v_add_u32 v16, s%d, v15' % sT3)
    I('v_lshlrev_b32 v17, 1, v16')
    BB = 16
    def bfr(cl): return W2F + (6 + cl) * 8
    for cl in range(3):
        I('buffer_load_dwordx2 %s, v17, %s, 0 offen offset:%d' % (v(bfr(cl), 2), srd(SB), 64 * cl), 'b')
        I('buffer_load_dwordx2 %s, v17, %s, 0 offen offset:%d' % (v(bfr(cl) + 2, 2), srd(SB), 64 * cl + 16), 'b')
    I('v_lshlrev_b32 v%d, 2, v16' % vFac)
    I('v_add_u32 v%d, %d, v%d' % (vFac, SFAC, vFac))
    I('v_bfe_u32 v16, v1, 2, 2'); I('v_add_u32 v15, v15, v16')
    I('v_mul_u32_u24 v15, 192, v15')
    I('v_and_b32 v16, 3, v1'); I('v_lshl_add_u32 v15, v16, 4, v15')
    I('s_mul_i32 s%d, s%d, %d' % (sT0, sW, W2RAW_W)); I('s_add_u32 s%d, s%d, %d' % (sT0, sT0, W2RAW))
    I('v_add_u32 v18, s%d, v15' % sT0)
    I('v_lshlrev_b32 v%d, 4, v1' % vAr)
    if W2S: I('v_add_u32 v%d, %d, v%d' % (vAr, W2S, vAr))
    I('s_mul_i32 s%d, s%d, %d' % (sT0, sW, 6 * 1024))
    I('v_add_u32 v%d, s%d, v%d' % (vW2sW, sT0, vAr))
    I('s_mul_i32 s%d, s%d, %d' % (sT0, sT4, 24 * 1024))
    I('v_add_u32 v%d, s%d, v%d' % (vArRem, sT0, vAr))
    I('s_and_b32 s%d, s2, %d' % (sT0, NREP - 1)); I('s_mul_i32 s%d, s%d, 1536' % (sT0, sT0)); I('s_add_u32 s%d, s%d, %d' % (sT0, sT0, WS_TOT))
    I('v_lshlrev_b32 v%d, 4, v1' % vPoll); I('v_add_u32 v%d, s%d, v%d' % (vPoll, sT0, vPoll))
    I('v_min_u32 v%d, 31, v1' % vPoll2); I('v_lshlrev_b32 v%d, 4, v%d' % (vPoll2, vPoll2)); I('v_add_u32 v%d, s%d, v%d' % (vPoll2, sT0, vPoll2))
    I('v_lshlrev_b32 v%d, 4, v1' % vSw); I('v_add_u32 v%d, %d, v%d' % (vSw, SFAC, vSw))
    A.wait_vm('w2')
    for cl in range(3):
        for T2 in range(3):
            for b in range(2):
                off = cl * 32 * 192 + 64 * T2 + 8 * b
                I('ds_read_b64_tr_b16 %s, v18 offset:%d' % (v(w2f(cl, T2, b) + 4, 2), off), 'w2r')
                I('ds_read_b64_tr_b16 %s, v18 offset:%d' % (v(w2f(cl, T2, b) + 6, 2), off + 8 * 192), 'w2r')
    A.wait_vm('b')
    A.wait_lg()
    for cl in range(3):
        for T2 in range(3):
            for b in range(2):
                d = W2F + (T2 * 2 + b) * 8
                c = '0' if cl == 0 else v(d, 4)
                I('v_mfma_f32_16x16x32_bf16 %s, %s, %s, %s' % (v(d, 4), v(w2f(cl, T2, b) + 4, 4), v(bfr(cl), 4), c))
    I('v_lshlrev_b32 v15, 5, v14')
    I('s_mul_i32 s%d, s%d, 384' % (sT0, sW)); I('s_add_u32 s%d, s%d, %d' % (sT0, sT0, BIASP))
    I('v_add_u32 v15, s%d, v15' % sT0)
    I('s_mov_b32 exec_lo, 0x00010001'); I('s_mov_b32 exec_hi, 0x00010001')
    for T2 in range(3):
        for b in range(2):
            I('ds_write_b128 v15, %s offset:%d' % (v(W2F + (T2 * 2 + b) * 8, 4), T2 * 128 + 16 * b))
    I('s_mov_b64 exec, -1')
    A.wait_lg()
    barrier()
    I('v_lshlrev_b32 v15, 5, v14'); I('v_add_u32 v15, %d, v15' % BIASP)
    for T2 in range(3):
        for b in range(2):
            d = W2F + (T2 * 2 + b) * 8
            I('ds_read_b128 %s, v15 offset:%d' % (v(d, 4), T2 * 128 + 16 * b), 'bp')
            for w in range(1, 4):
                I('ds_read_b128 %s, v15 offset:%d' % (v(W2F + (8 + w) * 8, 4), w * 384 + T2 * 128 + 16 * b), 'bp')
            A.wait_lg()
            for w in range(1, 4):
                for hh in (0, 2):
                    I('v_pk_add_f32 %s, %s, %s' % (v(d + hh, 2), v(d + hh, 2), v(W2F + (8 + w) * 8 + hh, 2)))
    A.wait_vm('xr')
    def unpack8(base):
        for k in range(4):
            I('v_lshlrev_b32 v%d, 16, v%d' % (base + 2 * k, base + 4 + k))
            I('v_and_b32 v%d, 0xffff0000, v%d' % (base + 2 * k + 1, base + 4 + k))
    for i in range(3):
        for T2 in range(3):
            c = ca(i, T2); unpack8(c)
            for b in range(2):
                for hh in (0, 2):
                    I('v_pk_add_f32 %s, %s, %s' % (v(c + 4 * b + hh, 2), v(c + 4 * b + hh, 2), v(W2F + (T2 * 2 + b) * 8 + hh, 2)))
    unpack8(CR)
    I('v_lshlrev_b32 v15, 5, v14')
    I('s_lshl_b32 s%d, s%d, 7' % (sT0, sT4)); I('s_add_u32 s%d, s%d, %d' % (sT0, sT0, BIASP))
    I('v_add_u32 v15, s%d, v15' % sT0)
    for w in range(4):
        for b in range(2):
            I('ds_read_b128 %s, v15 offset:%d' % (v(W2F + (9 + b) * 8, 4), w * 384 + 16 * b), 'bp')
        A.wait_lg()
        for b in range(2):
            for hh in (0, 2):
                I('v_pk_add_f32 %s, %s, %s' % (v(CR + 4 * b + hh, 2), v(CR + 4 * b + hh, 2), v(W2F + (9 + b) * 8 + hh, 2)))
    for cl in range(3):
        for T2 in range(3):
            for b in range(2): unpack8(w2f(cl, T2, b))
    A.wait_vm('g')
    I('s_mov_b32 s%d, %s' % (sT0, hx(f32(1.0 / AS))))
    for base in (vG, vG + 4):
        for k in range(2):
            I('v_lshlrev_b32 v%d, 16, v%d' % (base + 2 * k, base + 2 + k))
            I('v_and_b32 v%d, 0xffff0000, v%d' % (base + 2 * k + 1, base + 2 + k))
        for k in range(4): I('v_mul_f32 v%d, s%d, v%d' % (base + k, sT0, base + k))

def totals():
    I('s_cmp_lg_u32 s%d, 0' % sW)
    I('s_cbranch_scc1 L_tot_done')
    I('s_mov_b32 s%d, %d' % (sCnt, SPIN))
    A.label('L_tot')
    A.raw('buffer_load_dwordx4 %s, v%d, %s, 0 offen sc1' % (v(vTot, 4), vPoll, srd(SWS)))
    A.raw('buffer_load_dwordx4 %s, v%d, %s, 0 offen offset:1024 sc1' % (v(vTot + 4, 4), vPoll2, srd(SWS)))
    A.raw('s_waitcnt vmcnt(0)')
    I('v_max3_u32 v13, v%d, v%d, v%d' % (vTot, vTot + 1, vTot + 2))
    I('v_max3_u32 v13, v13, v%d, v%d' % (vTot + 3, vTot + 4))
    I('v_max3_u32 v13, v13, v%d, v%d' % (vTot + 5, vTot + 6))
    I('v_max_u32 v13, v13, v%d' % (vTot + 7))
    I('v_cmp_eq_u32 vcc, -1, v13')
    I('s_cbranch_vccz L_tot_got')
    I('s_sub_u32 s%d, s%d, 1' % (sCnt, sCnt))
    I('s_cmp_lg_u32 s%d, 0' % sCnt)
    I('s_cbranch_scc1 L_tot')
    A.label('L_tot_got')
    stamp()
    I('s_mov_b32 s%d, %s' % (sT0, hx(f32(1.0 / (AS * AS)))))
    I('s_mov_b32 s%d, %s' % (sT1, hx(f32(1e-6))))
    I('v_mov_b32 v13, s%d' % sT1)
    for k in range(8): I('v_fma_f32 v%d, v%d, s%d, v13' % (vTot + k, vTot + k, sT0))
    for k in range(8): I('v_sqrt_f32 v%d, v%d' % (vTot + k, vTot + k))
    I('v_add_f32 v14, v%d, v%d' % (vTot, vTot + 1)); I('v_add_f32 v15, v%d, v%d' % (vTot + 2, vTot + 3))
    I('v_add_f32 v14, v14, v15')
    I('v_add_f32 v15, v%d, v%d' % (vTot + 4, vTot + 5)); I('v_add_f32 v13, v%d, v%d' % (vTot + 6, vTot + 7))
    I('v_add_f32 v15, v15, v13')
    I('v_cmp_gt_u32 vcc, 32, v1')
    I('v_cndmask_b32 v15, 0, v15, vcc')
    I('v_add_f32 v14, v14, v15')
    for ctl in ('row_shr:1', 'row_shr:2', 'row_shr:4', 'row_shr:8'):
        I('v_add_f32_dpp v14, v14, v14 %s row_mask:0xf bank_mask:0xf bound_ctrl:1' % ctl)
    I('v_add_f32_dpp v14, v14, v14 row_bcast:15 row_mask:0xa bank_mask:0xf')
    I('v_add_f32_dpp v14, v14, v14 row_bcast:31 row_mask:0xc bank_mask:0xf')
    I('v_readlane_b32 s%d, v14, 63' % sT2)
    I('s_mov_b32 s%d, %s' % (sT0, hx(f32(1.0 / 384.0))))
    I('v_mov_b32 v13, s%d' % sT1)
    I('v_mov_b32 v15, s%d' % sT2)
    I('v_fma_f32 v13, v15, s%d, v13' % sT0)
    I('v_rcp_f32 v13, v13')
    I('s_mov_b32 s%d, %s' % (sT0, hx(f32(1.0 / AS))))
    for k in range(8): I('v_mul_f32 v%d, v%d, v13' % (vTot + k, vTot + k))
    I('v_mov_b32 v13, s%d' % sT0)
    for k in range(8): I('v_fma_f32 v%d, v%d, v%d, v13' % (vTot + k, vTot + k, vG + k))
    I('ds_write_b128 v%d, %s' % (vSw, v(vTot, 4)))
    I('s_mov_b32 exec_hi, 0')
    I('ds_write_b128 v%d, %s offset:1024' % (vSw, v(vTot + 4, 4)))
    I('s_mov_b64 exec, -1')
    A.wait_lg()
    A.label('L_tot_done')
    barrier()

def scale_w2():
    FB = [16, 24]
    def rd(cl):
        I('ds_read_b128 %s, v%d offset:%d' % (v(FB[cl & 1], 4), vFac, cl * 128), 'f%d' % cl)
        I('ds_read_b128 %s, v%d offset:%d' % (v(FB[cl & 1] + 4, 4), vFac, cl * 128 + 32), 'f%d' % cl)
    rd(0); rd(1)
    for cl in range(3):
        A.wait_lg('f%d' % cl)
        F = FB[cl & 1]
        for T2 in range(3):
            for b in range(2):
                r = w2f(cl, T2, b)
                for k in range(4): I('v_pk_mul_f32 %s, %s, %s' % (v(r + 2 * k, 2), v(r + 2 * k, 2), v(F + 2 * k, 2)))
                for k in range(4): I('v_cvt_pk_bf16_f32 v%d, v%d, v%d' % (r + k, r + 2 * k, r + 2 * k + 1))
                I('ds_write_b128 v%d, %s offset:%d' % (vW2sW, v(r, 4), ((T2 * 12 + cl) * 2 + b) * 1024), 'sw')
        if cl == 0: rd(2)
    A.wait_lg()
    barrier()

def phaseC():
    AB = [32 + 8 * k for k in range(4)]
    seq = []
    for T2 in (0, 1): seq += [('m', T2, c) for c in range(12)]
    seq += [('r', 0, c) for c in range(12)]
    seq += [('m', 2, c) for c in range(12)]
    def rd(k):
        kind, T2, c = seq[k]
        buf = AB[k % 4]
        if kind == 'm':
            base = (T2 * 12 + c) * 2048
            reg = vAr
            if base + 1024 > 65535 - 1024:
                pass
            lo = base
            r = vAr
            if lo >= 49152: r = 13; lo -= 49152
            I('ds_read_b128 %s, v%d offset:%d' % (v(buf, 4), r, lo), 'a%d' % k)
            I('ds_read_b128 %s, v%d offset:%d' % (v(buf + 4, 4), r, lo + 1024), 'a%d' % k)
        else:
            I('ds_read_b128 %s, v%d offset:%d' % (v(buf, 4), vArRem, c * 2048), 'a%d' % k)
            I('ds_read_b128 %s, v%d offset:%d' % (v(buf + 4, 4), vArRem, c * 2048 + 1024), 'a%d' % k)
    I('v_add_u32 v13, 49152, v%d' % vAr)
    def epilogue(regs, addr, off, masked=False):
        for k in range(4): I('v_cvt_pk_bf16_f32 v%d, v%d, v%d' % (regs + k, regs + 2 * k, regs + 2 * k + 1))
        if masked:
            I('s_mov_b32 exec_lo, 0x000f000f'); I('s_mov_b32 exec_hi, 0x000f000f')
        I('buffer_store_dwordx4 %s, v%d, %s, 0 offen offset:%d' % (v(regs, 4), addr, srd(SOUT), off), 'st')
        if masked: I('s_mov_b64 exec, -1')
    for k in range(3): rd(k)
    pend = []
    for k, (kind, T2, c) in enumerate(seq):
        if kind == 'r' and c == 0:
            pass
        if k + 3 < len(seq): rd(k + 3)
        A.wait_lg('a%d' % k)
        buf = AB[k % 4]
        if kind == 'm':
            for i in range(3):
                for b in range(2):
                    d = ca(i, T2) + 4 * b
                    I('v_mfma_f32_16x16x32_bf16 %s, %s, %s, %s' % (v(d, 4), v(buf + 4 * b, 4), a_(HM + i * 48 + c * 4, 4), v(d, 4)))
        else:
            for b in range(2):
                d = CR + 4 * b
                I('v_mfma_f32_16x16x32_bf16 %s, %s, %s, %s' % (v(d, 4), v(buf + 4 * b, 4), a_(HR + c * 4, 4), v(d, 4)))
        if pend and c == 2:
            for f in pend: f()
            pend = []
        if c == 11:
            if kind == 'm':
                for i in range(3): pend.append(lambda i=i, T2=T2: epilogue(ca(i, T2), vOut[i], 64 * T2))
            else:
                def remstore():
                    I('s_cmp_eq_u32 s%d, 3' % sW)
                    I('s_cbranch_scc1 L_norem')
                    epilogue(CR, vOut[3], 0, True)
                    A.label('L_norem')
                pend.append(remstore)
    for f in pend: f()

def dump_stamps():
    if not STAMPS: return
    I('s_waitcnt lgkmcnt(0)')
    I('s_cmp_lg_u32 s%d, 0' % sW)
    I('s_cbranch_scc1 L_end')
    I('s_lshl_b32 s%d, s2, 6' % sT0)
    I('s_add_u32 s%d, s%d, %d' % (sT0, sT0, WS_DBG))
    I('v_mov_b32 v12, s%d' % sT0)
    I('s_mov_b64 exec, 1')
    for k in range(nst[0]):
        I('v_mov_b32 v13, s%d' % (sStamp + 2 * k))
        I('buffer_store_dword v13, v12, %s, 0 offen offset:%d' % (srd(SWS), 4 * k))
    I('s_mov_b64 exec, -1')

def main():
    prologue()
    conv_setup()
    conv()
    layernorm()
    w1_reads()
    phaseB_setup()
    A.wait_lg()
    barrier()
    arrive()
    stamp()
    phaseB()
    publish()
    stamp()
    A.wait_lg()
    barrier()
    for T in range(12):
        for e2 in range(2):
            I('ds_read_b64_tr_b16 %s, v%d offset:%d' % (a_(HR + T * 4 + 2 * e2, 2), vRemR, T * 256 + e2 * 64), 'rr')
    check_cleared()
    reducer()
    wait_work()
    stamp()
    totals()
    scale_w2()
    stamp()
    phaseC()
    stamp()
    dump_stamps()
    A.label('L_end')
    I('s_endpgm')
    nn = A.fix_hazards()
    hdr = open('cdna_kernels/%s.s.ref' % NAME).read().split('; Override launch')[0]
    s = hdr
    s += "; Override launch geometry by editing the next line (default: block=256,\n"
    s += "; @launch grid=(256,1,1) block=(256,1,1) lds=%d\n" % LDS_BYTES
    s += "; Generated by a hand-written generator script (fused dwconv5x5 + LN + GEMM + GELU + GRN + GEMM, persistent, one workgroup per CU).\n"
    s += '.amdgcn_target "amdgcn-amd-amdhsa--gfx950"\n.text\n.globl %s_kernel\n.p2align 8\n.type %s_kernel,@function\n%s_kernel:\n' % (NAME, NAME, NAME)
    s += A.text()
    s += '''.section .rodata,"a"
.p2align 6
.amdhsa_kernel %s_kernel
  .amdhsa_next_free_vgpr 512
  .amdhsa_next_free_sgpr 102
  .amdhsa_accum_offset 256
  .amdhsa_group_segment_fixed_size 0
  .amdhsa_kernarg_size 72
  .amdhsa_user_sgpr_count 2
  .amdhsa_user_sgpr_kernarg_segment_ptr 1
  .amdhsa_system_sgpr_workgroup_id_x 1
  .amdhsa_float_denorm_mode_32 3
.end_amdhsa_kernel
''' % NAME
    open(OUT, 'w').write(s)
    print('instructions', A.count(), 'nops inserted', nn, 'bytes', len(s))
main()
```

```python
import re

REG_RE = re.compile(r'^(-|\|)?(abs\()?([vas])(\d+|\[(\d+):(\d+)\])')

def parse_reg(tok):
    t = tok.strip()
    t = t.lstrip('-').strip('|')
    if t in ('vcc',): return [('s', 106), ('s', 107)]
    if t == 'vcc_lo': return [('s', 106)]
    if t == 'vcc_hi': return [('s', 107)]
    if t == 'exec': return [('s', 126), ('s', 127)]
    if t == 'exec_lo': return [('s', 126)]
    if t == 'exec_hi': return [('s', 127)]
    if t == 'm0': return [('s', 124)]
    m = re.match(r'^([vas])(\d+)$', t)
    if m: return [(m.group(1), int(m.group(2)))]
    m = re.match(r'^([vas])\[(\d+):(\d+)\]$', t)
    if m: return [(m.group(1), i) for i in range(int(m.group(2)), int(m.group(3)) + 1)]
    return []

def split_ops(s):
    ops, depth, cur = [], 0, ''
    for ch in s:
        if ch in '[(': depth += 1
        if ch in '])': depth -= 1
        if ch == ',' and depth == 0:
            ops.append(cur.strip()); cur = ''
        else: cur += ch
    if cur.strip(): ops.append(cur.strip())
    out = []
    mods = []
    for o in ops:
        parts = o.split()
        out.append(parts[0]); mods += parts[1:]
    return out, mods

TRANS = ('v_exp_f32', 'v_rcp_f32', 'v_rsq_f32', 'v_sqrt_f32', 'v_log_f32', 'v_sin_f32', 'v_cos_f32')

class Ins:
    __slots__ = ('text', 'mn', 'ops', 'mods', 'defs', 'uses', 'kind', 'passes', 'srcC', 'comment')
    def __init__(self, text):
        self.text = text
        t = text.split(';')[0].strip()
        parts = t.split(None, 1)
        self.mn = parts[0]
        self.ops, self.mods = split_ops(parts[1]) if len(parts) > 1 else ([], [])
        self.defs, self.uses, self.passes, self.srcC = set(), set(), 0, set()
        mn, ops = self.mn, self.ops
        R = [parse_reg(o) for o in ops]
        def U(i):
            if i < len(R): self.uses.update(R[i])
        def D(i):
            if i < len(R): self.defs.update(R[i])
        if mn.startswith('v_mfma') or mn.startswith('v_smfmac'):
            self.kind = 'mfma'
            self.passes = 8 if '32x32' in mn else 4
            D(0); U(1); U(2)
            if mn.startswith('v_smfmac'):
                U(0); U(3); self.srcC = set(R[0])
            else:
                U(3); self.srcC = set(R[3])
        elif mn.startswith('v_cmp'):
            self.kind = 'valu'; D(0)
            for i in range(1, len(ops)): U(i)
        elif mn.startswith('v_readfirstlane') or mn.startswith('v_readlane'):
            self.kind = 'valu'; D(0)
            for i in range(1, len(ops)): U(i)
        elif mn.startswith('v_permlane') and 'swap' in mn:
            self.kind = 'valu'; D(0); D(1); U(0); U(1)
        elif mn.startswith('v_'):
            self.kind = 'valu'; D(0)
            for i in range(1, len(ops)): U(i)
            if mn.startswith(('v_fmac', 'v_pk_fmac', 'v_dot2c')) or '_dpp' in mn or 'v_writelane' in mn: U(0)
            if mn.startswith('v_cndmask') and len(ops) == 3: self.uses.update(parse_reg('vcc'))
            if mn.startswith(('v_add_co', 'v_sub_co', 'v_addc_co')): D(1)
        elif mn.startswith('ds_'):
            self.kind = 'ds'
            if mn.startswith(('ds_read', 'ds_bpermute', 'ds_permute', 'ds_swizzle')):
                D(0)
                for i in range(1, len(ops)): U(i)
            else:
                for i in range(len(ops)): U(i)
        elif mn.startswith(('buffer_', 'global_')):
            self.kind = 'vmem'
            is_lds = 'lds' in self.mods
            if 'load' in mn and not is_lds:
                D(0)
                for i in range(1, len(ops)): U(i)
            elif 'atomic' in mn and 'sc0' in self.mods:
                D(0)
                for i in range(len(ops)): U(i)
            else:
                for i in range(len(ops)): U(i)
            if is_lds: self.uses.add(('s', 124))
        elif mn.startswith('s_'):
            self.kind = 'salu'
            if mn in ('s_waitcnt', 's_nop', 's_barrier', 's_endpgm', 's_sleep', 's_setprio', 's_branch') or mn.startswith('s_cbranch'):
                pass
            elif mn.startswith(('s_cmp', 's_bitcmp')):
                for i in range(len(ops)): U(i)
            else:
                D(0)
                for i in range(1, len(ops)): U(i)
                if 'saveexec' in mn: self.defs.update(parse_reg('exec')); self.uses.update(parse_reg('exec'))
        else:
            raise ValueError('unknown instr ' + text)
    def states(self):
        if self.mn == 's_nop': return int(self.ops[0], 0) + 1
        return 1
    def is_trans(self): return self.mn.replace('_e32', '').replace('_e64', '') in TRANS
    def is_dpp(self): return '_dpp' in self.mn
    def is_permlane(self): return self.mn.startswith('v_permlane')
    def wide_store(self):
        return self.kind == 'vmem' and 'store' in self.mn and ('x3' in self.mn or 'x4' in self.mn)

def required_gap(p, c):
    need = 0
    pv = {r for r in p.defs if r[0] in 'va'}
    ps = {r for r in p.defs if r[0] == 's'}
    cu = c.uses; cd = c.defs
    if p.kind == 'valu':
        if pv & cu:
            if c.kind == 'mfma': need = max(need, 2)
            if c.is_dpp() or c.is_permlane(): need = max(need, 2)
            if c.mn.startswith(('v_readfirstlane', 'v_readlane')): need = max(need, 1)
            if p.is_trans() and c.kind in ('valu',) : need = max(need, 1)
        if c.is_dpp() and (pv & cd): need = max(need, 2) if (pv & cu) else need
        if ps & cu:
            if c.kind == 'valu': need = max(need, 2)
            if c.kind == 'vmem': need = max(need, 5)
            if c.mn.startswith(('v_readlane', 'v_writelane')): need = max(need, 4)
    if p.kind == 'mfma':
        d = pv
        n_other = 8 if p.passes == 4 else 12
        if c.kind == 'mfma':
            if d & c.srcC:
                same = (d == c.srcC) and (p.passes == c.passes)
                if not same: need = max(need, 6 if p.passes == 4 else 10)
            ab = cu - c.srcC
            if d & ab: need = max(need, n_other)
            if (d & cd) and not (d & c.srcC): need = max(need, n_other)
        else:
            if d & (cu | cd): need = max(need, n_other)
        if c.kind == 'valu' and (p.srcC & cd): need = max(need, 3 if p.passes == 4 else 7)
    if p.kind == 'salu' and ('s', 124) in p.defs and c.kind == 'vmem' and 'lds' in c.mods: need = max(need, 1)
    if p.wide_store() and c.kind == 'valu':
        data = set(parse_reg(p.ops[0])) if p.mn.startswith('buffer') else set(parse_reg(p.ops[1]))
        if data & cd: need = max(need, 2)
    return need

class Asm:
    def __init__(self):
        self.items = []
        self.vm = []
        self.lg = []
    def raw(self, s): self.items.append(s)
    def label(self, name): self.items.append(name + ':')
    def c(self, s): self.items.append('; ' + s)
    def __call__(self, text, tag=None):
        ins = Ins(text)
        self.items.append(ins)
        if ins.kind == 'vmem': self.vm.append(tag)
        elif ins.kind == 'ds': self.lg.append(tag)
        return ins
    def wait_vm(self, tag=None):
        if tag is None: n = 0
        else:
            idx = [i for i, t in enumerate(self.vm) if t == tag]
            if not idx: return
            n = len(self.vm) - 1 - idx[-1]
        n = min(n, 63)
        self('s_waitcnt vmcnt(%d)' % n)
        self.vm = self.vm[len(self.vm) - n:] if n else []
    def wait_lg(self, tag=None):
        if tag is None: n = 0
        else:
            idx = [i for i, t in enumerate(self.lg) if t == tag]
            if not idx: return
            n = len(self.lg) - 1 - idx[-1]
        n = min(n, 15)
        self('s_waitcnt lgkmcnt(%d)' % n)
        self.lg = self.lg[len(self.lg) - n:] if n else []
    def wait_all(self):
        self('s_waitcnt vmcnt(0) lgkmcnt(0)'); self.vm = []; self.lg = []
    def fix_hazards(self, window=40):
        out = []
        hist = []
        nins = 0
        open_br = {}
        for it in self.items:
            if isinstance(it, str):
                out.append(it)
                if it.endswith(':'):
                    lab = it[:-1]
                    if lab in open_br:
                        for k in range(open_br.pop(lab) + 1, len(hist)): hist[k] = (hist[k][0], 0)
                continue
            need = 0; dist = 0
            for p, cr in reversed(hist[-window:]):
                g = required_gap(p, it)
                if g > dist: need = max(need, g - dist)
                dist += cr
                if dist > 20: break
            while need > 0:
                k = min(need, 16)
                nop = Ins('s_nop %d' % (k - 1)); out.append(nop); hist.append((nop, nop.states())); need -= k; nins += 1
            out.append(it); hist.append((it, it.states()))
            if it.mn.startswith('s_cbranch') or it.mn == 's_branch':
                lab = it.ops[0]
                if lab not in open_br: open_br[lab] = len(hist) - 1
        self.items = out
        return nins
    def text(self):
        s = []
        for it in self.items:
            if isinstance(it, str):
                s.append(it if it.endswith(':') or it.startswith(('.', ';')) else '  ' + it)
            else: s.append('  ' + it.text)
        return '\n'.join(s) + '\n'
    def count(self):
        return sum(1 for it in self.items if not isinstance(it, str))
```

```python
import sys, math, struct
from asmlib import Asm

NAME = "standalone__modern_conv_block_slak__vision"
OPT = dict(st_pro=0, debug=0, stamps=0, pref=1, ahead=8, st_conv=0, x_nofin=0, x_nostats=0, x_now1=0, x_nobar=0, x_nosmf=0)
for a in sys.argv[1:]:
    if '=' in a and not a.startswith('out='):
        k, v_ = a.split('='); OPT[k] = int(v_)
OUT = [a[4:] for a in sys.argv[1:] if a.startswith('out=')]
OUT = OUT[0] if OUT else "cdna_kernels/%s.s" % NAME
DEBUG = OPT['debug']; STAMPS = OPT['stamps']

def f32(x): return struct.unpack('<I', struct.pack('<f', x))[0]
def hx(x): return '0x%08x' % (x & 0xffffffff)

C1 = -2.0 * math.log2(math.e) * math.sqrt(2.0 / math.pi)
C2 = C1 * 0.044715
AS = -((-C2) ** (1.0 / 3.0))
KK = C1 / AS

XROW = 3584
XS = 0
DWS = 18 * XROW;   DWS_W = 1280
W1S = DWS + 4 * DWS_W;   W1S_W = 18432
STATS = W1S + 4 * W1S_W
YB = 0;            YP = 208
RING = 40960;      SETSZ = 49152
REM = 0
W2RAW = 90112;     W2RAW_W = 18432
W2S = 0
SFAC = 73728
BIASP = 4096
REDB = 8192
LDS_BYTES = 163840
assert STATS + 7168 <= LDS_BYTES
WS_PART = 0; WS_TOT = 0x80000; WS_DBG = 0x100000
NREP = 16; NRED = 24
SPIN = 400000

sW = 22
SX, SDW, SW1, SW2, SOUT, SWS, SDBG, SG, SB = 24, 28, 32, 36, 40, 44, 48, 52, 56
sGY0, sGX0 = 60, 61
sT0, sT1, sT2, sT3, sT4, sT5 = 62, 63, 64, 65, 66, 67
sEX = 68
sMc4 = 70; sM14 = 72; sK = 74
sTY, sTX = 76, 77
sCnt = 78; sRT = 79
sPoll = 69
sStamp = 80
sXM, sXO = 23, 3
sW1M, sW1O = 100, 101
def srd(b): return 's[%d:%d]' % (b, b + 3)
def sp(b): return 's[%d:%d]' % (b, b + 1)
def v(b, n=1): return 'v%d' % b if n == 1 else 'v[%d:%d]' % (b, b + n - 1)
def a_(b, n=1): return 'a%d' % b if n == 1 else 'a[%d:%d]' % (b, b + n - 1)

A = Asm(); I = A
nst = [0]; stamp_names = []
def stamp(name=''):
    if STAMPS:
        k = nst[0]; nst[0] += 1
        assert k < 16
        stamp_names.append(name)
        A.wait_lg()
        I('%s %s' % ('s_memtime' if STAMPS == 2 else 's_memrealtime', sp(98)))
        I('s_waitcnt lgkmcnt(0)')
        I('s_mov_b32 s%d, s98' % (sStamp + k))
def barrier(): I('s_barrier')

vYr, vYrem = 2, 3
vHW = [[4, 5], [6, 7]]
vHR = [8, 9]
vRemW, vRemR = 10, 11
vOut = [12, 13, 14, 15]
vH, vV1, vV2, vStW, vStR, vY = 16, 17, 18, 19, 20, 21
vW1 = 22
vChk = 30; vChkA = 31
vAr, vFac, vW2r, vBp, vPoll2, vBa = 23, 24, 25, 26, 27, 28
vXo = 240; vW1o = [241, 242, 243]; vPf = 244; vPfD = 245
AC = 32; vIDX = 80; BH = 84; BV = 108; DC = 132; TS = 216; FN = 224
def ac(o, f): return AC + (o * 4 + f) * 4
def dc(t, o): return DC + (t * 3 + o) * 4
W1F = 32
def w1f(t, kc): return W1F + (t * 6 + kc) * 4
ACC = [104, 120]; TT = 136; PP = 152; SQ = 160; RS = 172
YA = [192, 216]; HM = 0; HR = 144; YR = 144; ACCR = 240

def mk(b, p, n):
    I('s_mov_b32 s%d, s%d' % (b, p)); I('s_and_b32 s%d, s%d, 0xffff' % (b + 1, p + 1))
    I('s_mov_b32 s%d, %s' % (b + 2, hx(n))); I('s_mov_b32 s%d, 0x20000' % (b + 3))

xrow_next = [0]
def x_dma(n):
    for _ in range(n):
        r = xrow_next[0]
        if r > 17: return
        xrow_next[0] += 1
        I('s_mov_b32 m0, s%d' % sXM)
        if r < 2:
            I('s_cmp_lt_i32 s%d, 0' % sXO)
            I('s_cselect_b32 s%d, 2.0, s%d' % (sT3, sXO)); so = sT3
        else: so = sXO
        I('buffer_load_dwordx4 v%d, %s, s%d offen lds' % (vXo, srd(SX), so), 'x%d' % r)
        if r < 17:
            I('s_add_u32 s%d, s%d, %d' % (sXM, sXM, XROW)); I('s_add_u32 s%d, s%d, 43008' % (sXO, sXO))
def exec54(): I('s_mov_b32 exec_hi, 0x003fffff')
def execall(): I('s_mov_b64 exec, -1')
w1_next = [0]
def w1_dma(n):
    for _ in range(n):
        k = w1_next[0]
        if k >= 18: return
        w1_next[0] += 1
        G, c = divmod(k, 3)
        I('s_mov_b32 m0, s%d' % sW1M)
        I('s_add_u32 s%d, s%d, 1024' % (sW1M, sW1M))
        I('buffer_load_dwordx4 v%d, %s, s%d offen lds' % (vW1o[c], srd(SW1), sW1O), 'w1')
        if c == 2 and G < 5: I('s_add_u32 s%d, s%d, %d' % (sW1O, sW1O, 16 * 768))

def prologue():
    T = 216
    I('s_cmp_ge_u32 s2, 256')
    I('s_cbranch_scc1 L_end')
    I('s_load_dwordx16 s[4:19], s[0:1], 0')
    I('s_load_dwordx2 s[20:21], s[0:1], 64')
    if STAMPS:
        I('%s %s' % ('s_memtime' if STAMPS == 2 else 's_memrealtime', sp(98)))
        nst[0] += 1; stamp_names.append('start')
    I('v_and_b32 v1, 63, v0')
    I('v_lshrrev_b32 v%d, 6, v0' % T)
    I('s_and_b32 s%d, s2, 7' % sT0)
    I('s_lshr_b32 s%d, s2, 3' % sT1)
    I('v_readfirstlane_b32 s%d, v%d' % (sW, T))
    I('s_lshr_b32 s%d, s%d, 1' % (sT2, sT0)); I('s_lshl_b32 s%d, s%d, 2' % (sT2, sT2))
    I('s_lshr_b32 s%d, s%d, 3' % (sT3, sT1)); I('s_add_u32 s%d, s%d, s%d' % (sTY, sT2, sT3))
    I('s_and_b32 s%d, s%d, 1' % (sT2, sT0)); I('s_lshl_b32 s%d, s%d, 3' % (sT2, sT2))
    I('s_and_b32 s%d, s%d, 7' % (sT3, sT1)); I('s_add_u32 s%d, s%d, s%d' % (sTX, sT2, sT3))
    I('s_mul_i32 s%d, s%d, 14' % (sGY0, sTY)); I('s_sub_u32 s%d, s%d, 2' % (sGY0, sGY0))
    I('s_mul_i32 s%d, s%d, 14' % (sGX0, sTX)); I('s_sub_u32 s%d, s%d, 2' % (sGX0, sGX0))
    I('v_mul_u32_u24 v%d, 57, v1' % T); I('v_lshrrev_b32 v%d, 10, v%d' % (T, T))
    I('v_mul_u32_u24 v%d, 18, v%d' % (T + 1, T)); I('v_sub_u32 v%d, v1, v%d' % (T + 1, T + 1))
    I('v_add_u32 v%d, s%d, v%d' % (T + 1, sGX0, T + 1))
    I('s_mul_i32 s%d, s%d, 48' % (sT0, sW))
    I('v_mul_i32_i24 v%d, 192, v%d' % (T + 2, T + 1))
    I('v_lshl_add_u32 v%d, v%d, 4, v%d' % (T + 2, T, T + 2))
    I('v_add_u32 v%d, s%d, v%d' % (T + 2, sT0, T + 2))
    I('v_mov_b32 v%d, 0x80000000' % (T + 3))
    I('v_cmp_gt_u32 vcc, 224, v%d' % (T + 1))
    I('v_cndmask_b32 v%d, v%d, v%d, vcc' % (vXo, T + 3, T + 2))
    I('v_mul_u32_u24 v%d, 171, v1' % T); I('v_lshrrev_b32 v%d, 9, v%d' % (T, T))
    I('v_mul_u32_u24 v%d, 3, v%d' % (T + 1, T)); I('v_sub_u32 v%d, v1, v%d' % (T + 1, T + 1))
    I('v_mul_u32_u24 v%d, 192, v%d' % (T, T)); I('v_lshl_add_u32 v%d, v%d, 4, v%d' % (T, T + 1, T))
    I('v_add_u32 v%d, s%d, v%d' % (T + 4, sT0, T))
    I('v_add_u32 v%d, 64, v1' % (T + 1))
    I('v_mul_u32_u24 v%d, 171, v%d' % (T, T + 1)); I('v_lshrrev_b32 v%d, 9, v%d' % (T, T))
    I('v_mul_u32_u24 v%d, 3, v%d' % (T + 2, T)); I('v_sub_u32 v%d, v%d, v%d' % (T + 2, T + 1, T + 2))
    I('v_mul_u32_u24 v%d, 192, v%d' % (T, T)); I('v_lshl_add_u32 v%d, v%d, 4, v%d' % (T, T + 2, T))
    I('v_add_u32 v%d, s%d, v%d' % (T, sT0, T))
    I('v_cmp_gt_u32 vcc, 75, v%d' % (T + 1))
    I('v_cndmask_b32 v%d, v%d, v%d, vcc' % (T + 5, T + 3, T))
    I('s_mul_i32 s%d, s%d, 864' % (sXM, sW))
    I('s_mul_i32 s%d, s%d, 43008' % (sXO, sGY0))
    I('s_mul_i32 s%d, s%d, %d' % (sT1, sW, DWS_W)); I('s_add_u32 s%d, s%d, %d' % (sT1, sT1, DWS))
    I('s_add_u32 s%d, s%d, 1024' % (sT2, sT1))
    I('s_waitcnt lgkmcnt(0)')
    if STAMPS: I('s_mov_b32 s%d, s98' % sStamp)
    mk(SDW, 6, 4800); mk(SX, 4, 9633792)
    I('s_mov_b32 m0, s%d' % sT1)
    I('buffer_load_dwordx4 v%d, %s, 0 offen lds' % (T + 4, srd(SDW)), 'dw')
    I('s_mov_b32 m0, s%d' % sT2)
    I('s_mov_b32 exec_lo, 0xffff'); I('s_mov_b32 exec_hi, 0')
    I('buffer_load_dwordx4 v%d, %s, 0 offen lds' % (T + 5, srd(SDW)), 'dw')
    I('s_mov_b32 exec_lo, -1'); exec54()
    x_dma(OPT['ahead'])
    execall()
    stamp('x issued')
    mk(SW1, 8, 73728); mk(SW2, 10, 73728)
    mk(SWS, 20, 0x200000 if (DEBUG or STAMPS) == 0 else 0x8000000)
    if OPT['pref']:
        I('s_lshr_b32 s%d, s2, 3' % sT0); I('s_lshl_b32 s%d, s%d, 2' % (sT0, sT0)); I('s_add_u32 s%d, s%d, s%d' % (sT0, sT0, sW))
        I('s_mul_i32 s%d, s%d, 640' % (sT1, sT0))
        I('v_lshlrev_b32 v%d, 7, v1' % vPf); I('v_add_u32 v%d, s%d, v%d' % (vPf, sT1, vPf))
        I('s_mov_b64 exec, 31')
        I('buffer_load_dword v%d, v%d, %s, 0 offen' % (vPfD, vPf, srd(SW1)), 'pf')
        I('buffer_load_dword v%d, v%d, %s, 0 offen' % (vPfD, vPf, srd(SW2)), 'pf')
        I('s_getpc_b64 %s' % sp(sT4))
        A.label('L_pc')
        I('s_lshl_b32 s%d, s%d, 8' % (sT1, sT0))
        I('v_lshlrev_b32 v%d, 7, v1' % vPf); I('v_add_u32 v%d, s%d, v%d' % (vPf, sT1, vPf))
        I('v_min_u32 v%d, CODE_LAST, v%d' % (vPf, vPf))
        I('s_mov_b64 exec, 3')
        I('global_load_dword v%d, v%d, %s' % (vPfD, vPf, sp(sT4)), 'pf')
        execall()
    mk(SDBG, 18, 256); mk(SOUT, 16, 9633792); mk(SG, 12, 768); mk(SB, 14, 768)
    for c in range(3):
        I('v_add_u32 v%d, %d, v1' % (T, 64 * c))
        I('v_mul_u32_u24 v%d, 171, v%d' % (T + 1, T)); I('v_lshrrev_b32 v%d, 11, v%d' % (T + 1, T + 1))
        I('v_mul_u32_u24 v%d, 12, v%d' % (T + 2, T + 1)); I('v_sub_u32 v%d, v%d, v%d' % (T + 2, T, T + 2))
        I('v_mul_u32_u24 v%d, 768, v%d' % (T + 1, T + 1))
        I('v_lshl_add_u32 v%d, v%d, 4, v%d' % (vW1o[c], T + 2, T + 1))
    for p in range(192): assert (p * 171) >> 11 == p // 12
    I('s_mul_i32 s%d, s%d, 192' % (sW1O, sW))
    I('s_mul_i32 s%d, s%d, %d' % (sW1M, sW, W1S_W)); I('s_add_u32 s%d, s%d, %d' % (sW1M, sW1M, W1S))

def conv_setup():
    T = 216
    n_, g_, g1, sg = T, T + 1, T + 2, T + 3
    t0, t1, t2 = T + 4, T + 5, T + 6
    I('v_and_b32 v%d, 15, v1' % n_); I('v_lshrrev_b32 v%d, 4, v1' % g_)
    I('v_and_b32 v%d, 1, v%d' % (g1, g_)); I('v_lshrrev_b32 v%d, 1, v%d' % (sg, g_))
    I('s_mul_i32 s%d, s%d, 864' % (sT0, sW))
    I('v_add_u32 v%d, v%d, v%d' % (t0, n_, g_)); I('v_lshlrev_b32 v%d, 4, v%d' % (t0, t0))
    I('v_add_u32 v%d, s%d, v%d' % (vH, sT0, t0))
    I('v_add_u32 v%d, 4, v%d' % (t1, n_)); I('v_lshlrev_b32 v%d, 4, v%d' % (t1, t1)); I('v_add_u32 v%d, s%d, v%d' % (t1, sT0, t1))
    I('v_mul_u32_u24 v%d, %d, v%d' % (t0, XROW, g_)); I('v_add_u32 v%d, v%d, v%d' % (vV1, t0, t1))
    I('v_add_u32 v%d, 4, v%d' % (t0, g1)); I('v_mul_u32_u24 v%d, %d, v%d' % (t0, XROW, t0)); I('v_add_u32 v%d, v%d, v%d' % (vV2, t0, t1))
    I('v_lshl_add_u32 v%d, v%d, 4, v%d' % (t0, sg, n_)); I('v_lshlrev_b32 v%d, 5, v%d' % (t0, t0))
    I('v_add_u32 v%d, %d, v%d' % (vStR, STATS, t0))
    I('s_lshl_b32 s%d, s%d, 3' % (sT1, sW))
    I('v_lshl_add_u32 v%d, v%d, 2, v%d' % (t0, g1, vStR)); I('v_add_u32 v%d, s%d, v%d' % (vStW, sT1, t0))
    I('v_mul_u32_u24 v%d, 14, v%d' % (t0, sg)); I('v_add_u32 v%d, v%d, v%d' % (t0, t0, n_))
    I('v_mul_u32_u24 v%d, %d, v%d' % (t0, YP, t0)); I('v_lshl_add_u32 v%d, v%d, 3, v%d' % (t0, g1, t0))
    I('s_mul_i32 s%d, s%d, 48' % (sT1, sW)); I('v_add_u32 v%d, s%d, v%d' % (vY, sT1, t0))
    I('s_mov_b32 s%d, 0x0f0f0f0f' % sMc4); I('s_mov_b32 s%d, 0x0f0f0f0f' % (sMc4 + 1))
    I('s_mov_b32 s%d, 0x3fff3fff' % sM14); I('s_mov_b32 s%d, 0x3fff3fff' % (sM14 + 1))
    sm, cb, zs, gh = T + 7, T + 8, T + 9, T + 10
    I('v_lshrrev_b32 v%d, 3, v%d' % (sm, n_)); I('v_and_b32 v%d, 7, v%d' % (cb, n_))
    I('s_mul_i32 s%d, s%d, %d' % (sT1, sW, DWS_W)); I('s_add_u32 s%d, s%d, %d' % (sT1, sT1, DWS))
    I('v_lshl_add_u32 v%d, v%d, 1, s%d' % (cb, cb, sT1))
    I('v_add_u32 v%d, %d, v%d' % (zs, 75 * 16, cb))
    I('v_and_b32 v%d, 3, v%d' % (t0, n_)); I('v_mul_u32_u24 v%d, 0x5555, v%d' % (vIDX, t0))
    for f in range(4):
        for hlf in range(2):
            dst = 22 + f * 2 + hlf
            if f < 3:
                I('v_sub_u32 v%d, v%d, v%d' % (t0, sg, sm))
                if f: I('v_add_u32 v%d, %d, v%d' % (t0, 2 * f, t0))
                I('v_mul_i32_i24 v%d, 5, v%d' % (t1, t0))
                I('v_lshl_add_u32 v%d, v%d, 1, v%d' % (t1, g1, t1))
                if hlf: I('v_add_u32 v%d, 1, v%d' % (t1, t1))
            else:
                I('v_lshlrev_b32 v%d, 1, v%d' % (t0, g_)); I('v_sub_u32 v%d, v%d, v%d' % (t0, t0, sm))
                if hlf: I('v_add_u32 v%d, 1, v%d' % (t0, t0))
                I('v_mul_i32_i24 v%d, 5, v%d' % (t1, t0)); I('v_add_u32 v%d, 4, v%d' % (t1, t1))
            I('v_mul_i32_i24 v%d, 48, v%d' % (t1, t1)); I('v_add_u32 v%d, v%d, v%d' % (t1, cb, t1))
            I('v_cmp_gt_u32 vcc, 5, v%d' % t0)
            I('v_cndmask_b32 v%d, v%d, v%d, vcc' % (dst, zs, t1))

def later_setup():
    T = 228
    m_, hf, t0, t1, t2 = T, T + 1, T + 2, T + 3, T + 4
    I('v_and_b32 v%d, 31, v1' % m_); I('v_lshrrev_b32 v%d, 5, v1' % hf)
    I('v_and_b32 v%d, 0x13, v%d' % (t0, m_))
    I('v_and_b32 v%d, 4, v%d' % (t1, m_)); I('v_lshl_or_b32 v%d, v%d, 1, v%d' % (t0, t1, t0))
    I('v_and_b32 v%d, 8, v%d' % (t1, m_)); I('v_lshrrev_b32 v%d, 1, v%d' % (t1, t1)); I('v_or_b32 v%d, v%d, v%d' % (t0, t0, t1))
    I('v_mul_u32_u24 v%d, %d, v%d' % (t0, YP, t0)); I('v_lshl_add_u32 v%d, v%d, 4, v%d' % (vYr, hf, t0))
    I('v_bfe_u32 v%d, v%d, 2, 1' % (t0, m_)); I('v_and_b32 v%d, 1, v%d' % (t1, m_))
    I('v_lshl_add_u32 v%d, v%d, 1, v%d' % (t0, t0, t1)); I('v_add_u32 v%d, 192, v%d' % (t0, t0))
    I('v_mul_u32_u24 v%d, %d, v%d' % (t0, YP, t0)); I('v_lshl_add_u32 v%d, v%d, 4, v%d' % (vYrem, hf, t0))
    I('s_mul_i32 s%d, s%d, %d' % (sT0, sW, 96 * 128)); I('s_add_u32 s%d, s%d, %d' % (sT0, sT0, RING))
    I('v_lshlrev_b32 v%d, 7, v%d' % (t0, m_)); I('v_add_u32 v%d, s%d, v%d' % (t0, sT0, t0))
    I('v_and_b32 v%d, 7, v%d' % (t1, m_)); I('v_xor_b32 v%d, v%d, v%d' % (t1, t1, hf))
    for jp in range(2):
        for s in range(2):
            I('v_xor_b32 v%d, %d, v%d' % (t2, 4 * jp + 2 * s, t1))
            I('v_lshl_add_u32 v%d, v%d, 4, v%d' % (vHW[jp][s], t2, t0))
    I('s_mul_i32 s%d, s%d, %d' % (sT0, sW, 96 * 8))
    I('v_lshlrev_b32 v%d, 3, v%d' % (t0, m_)); I('v_lshl_add_u32 v%d, v%d, 2, v%d' % (t0, hf, t0))
    I('v_add_u32 v%d, s%d, v%d' % (vRemW, sT0, t0))
    g_, rr, cc = T, T + 1, T + 5
    I('v_lshrrev_b32 v%d, 4, v1' % g_); I('v_bfe_u32 v%d, v1, 2, 2' % rr); I('v_and_b32 v%d, 3, v1' % cc)
    I('v_lshrrev_b32 v%d, 1, v%d' % (t0, g_)); I('v_lshlrev_b32 v%d, 4, v%d' % (t0, t0))
    I('v_and_b32 v%d, 1, v%d' % (t1, g_)); I('v_lshl_add_u32 v%d, v%d, 2, v%d' % (t1, t1, rr))
    I('v_add_u32 v%d, v%d, v%d' % (t0, t0, t1))
    I('v_lshlrev_b32 v%d, 3, v%d' % (vRemR, t0))
    I('s_lshl_b32 s%d, s%d, 1' % (sT0, sW))
    I('v_lshrrev_b32 v%d, 1, v%d' % (t2, cc)); I('v_add_u32 v%d, s%d, v%d' % (t2, sT0, t2)); I('v_xor_b32 v%d, v%d, v%d' % (t2, t2, t1))
    I('v_lshlrev_b32 v%d, 7, v%d' % (t0, t0)); I('v_lshl_add_u32 v%d, v%d, 4, v%d' % (t0, t2, t0))
    I('v_and_b32 v%d, 1, v%d' % (t2, cc)); I('v_lshl_add_u32 v%d, v%d, 3, v%d' % (t0, t2, t0))
    I('v_add_u32 v%d, %d, v%d' % (vHR[0], RING, t0)); I('v_add_u32 v%d, %d, v%d' % (vHR[1], RING + SETSZ, t0))
    I('s_mov_b32 s%d, %s' % (sK, hx(f32(KK)))); I('s_mov_b32 s%d, %s' % (sK + 1, hx(f32(KK))))
    n_ = T + 1
    I('v_and_b32 v%d, 15, v1' % n_)
    I('s_mul_i32 s%d, s%d, 14' % (sT2, sTY)); I('s_mul_i32 s%d, s%d, 14' % (sT3, sTX))
    I('s_mul_i32 s%d, s%d, 224' % (sT2, sT2)); I('s_add_u32 s%d, s%d, s%d' % (sT2, sT2, sT3))
    I('s_mul_i32 s%d, s%d, 192' % (sT2, sT2))
    I('s_lshl_b32 s%d, s%d, 4' % (sT3, sW))
    for i in range(4):
        if i < 3:
            I('v_add_u32 v%d, s%d, v%d' % (t0, sT3, n_))
            if i: I('v_add_u32 v%d, %d, v%d' % (t0, 64 * i, t0))
        else:
            I('v_and_b32 v%d, 3, v%d' % (t0, n_)); I('v_add_u32 v%d, 192, v%d' % (t0, t0))
        I('v_mul_u32_u24 v%d, 4682, v%d' % (t1, t0)); I('v_lshrrev_b32 v%d, 16, v%d' % (t1, t1))
        I('v_mul_u32_u24 v%d, 14, v%d' % (t2, t1)); I('v_sub_u32 v%d, v%d, v%d' % (t2, t0, t2))
        I('v_mul_u32_u24 v%d, 224, v%d' % (t1, t1)); I('v_add_u32 v%d, v%d, v%d' % (t1, t1, t2))
        I('v_mul_u32_u24 v%d, 192, v%d' % (t1, t1)); I('v_lshl_add_u32 v%d, v%d, 4, v%d' % (t1, g_, t1))
        I('v_add_u32 v%d, s%d, v%d' % (vOut[i], sT2, t1))
    for p in range(208): assert (p * 4682) >> 16 == p // 14
    I('s_min_u32 s%d, s%d, 2' % (sRT, sW))
    I('s_lshl_b32 s%d, s%d, 6' % (sT5, sRT))
    I('v_add_u32 v%d, s%d, v%d' % (vOut[3], sT5, vOut[3]))
    I('v_and_b32 v%d, 3, v1' % vChkA); I('v_lshlrev_b32 v%d, 6, v%d' % (vChkA, vChkA))

def phaseC_addr():
    T = 232
    g_, ro, ch, t0 = T, T + 1, T + 2, T + 3
    I('v_lshlrev_b32 v%d, 4, v1' % vAr)
    I('v_lshrrev_b32 v%d, 4, v1' % g_)
    I('v_lshrrev_b32 v%d, 1, v%d' % (ro, g_)); I('v_lshlrev_b32 v%d, 4, v%d' % (ro, ro))
    I('v_and_b32 v%d, 1, v%d' % (t0, g_)); I('v_lshl_add_u32 v%d, v%d, 2, v%d' % (ro, t0, ro))
    I('s_mul_i32 s%d, s%d, 96' % (sT3, sW)); I('v_add_u32 v%d, s%d, v%d' % (ch, sT3, ro))
    I('v_lshlrev_b32 v%d, 1, v%d' % (vBa, ch))
    I('v_lshlrev_b32 v%d, 2, v%d' % (vFac, ch)); I('v_add_u32 v%d, %d, v%d' % (vFac, SFAC, vFac))
    I('v_bfe_u32 v%d, v1, 2, 2' % t0); I('v_add_u32 v%d, v%d, v%d' % (ro, ro, t0)); I('v_mul_u32_u24 v%d, 192, v%d' % (ro, ro))
    I('v_and_b32 v%d, 3, v1' % t0); I('v_lshl_add_u32 v%d, v%d, 4, v%d' % (ro, t0, ro))
    I('s_mul_i32 s%d, s%d, %d' % (sT0, sW, W2RAW_W)); I('s_add_u32 s%d, s%d, %d' % (sT0, sT0, W2RAW))
    I('v_add_u32 v%d, s%d, v%d' % (vW2r, sT0, ro))
    I('s_and_b32 s%d, s2, %d' % (sT0, NREP - 1)); I('s_mul_i32 s%d, s%d, 1536' % (sT0, sT0)); I('s_add_u32 s%d, s%d, %d' % (sPoll, sT0, WS_TOT))
    I('v_min_u32 v%d, 31, v1' % vPoll2); I('v_lshlrev_b32 v%d, 4, v%d' % (vPoll2, vPoll2)); I('v_add_u32 v%d, s%d, v%d' % (vPoll2, sPoll, vPoll2))
    I('v_lshlrev_b32 v%d, 5, v%d' % (vBp, g_))
def phaseC_addr2(): pass

def clears():
    T = 240
    I('v_mov_b32 v%d, -1' % (T + 8)); I('v_mov_b32 v%d, -1' % (T + 9)); I('v_mov_b32 v%d, -1' % (T + 10)); I('v_mov_b32 v%d, -1' % (T + 11))
    I('s_mul_i32 s%d, s2, 1536' % sT1); I('s_mul_i32 s%d, s%d, 384' % (sT2, sW)); I('s_add_u32 s%d, s%d, s%d' % (sT1, sT1, sT2))
    I('v_lshlrev_b32 v%d, 4, v1' % (T + 12)); I('v_add_u32 v%d, s%d, v%d' % (T + 12, sT1, T + 12))
    I('s_mov_b32 exec_lo, 0x00ffffff'); I('s_mov_b32 exec_hi, 0')
    I('buffer_store_dwordx4 %s, v%d, %s, 0 offen sc1' % (v(T + 8, 4), T + 12, srd(SWS)), 'clr')
    I('s_cmp_ge_u32 s2, %d' % NREP)
    I('s_cselect_b32 s%d, 2.0, %d' % (sT1, WS_TOT))
    I('buffer_store_dwordx4 %s, v%d, %s, s%d offen sc1' % (v(T + 8, 4), T + 12, srd(SWS), sT1), 'clr')
    execall()

def conv():
    A.wait_vm('dw')
    if OPT['st_pro']: stamp('dw landed')
    for o in range(3):
        for f in range(4):
            for hlf in range(2):
                I('ds_read_u16 v%d, v%d offset:%d' % (BH + (o * 4 + f) * 2 + hlf, 22 + f * 2 + hlf, 16 * o), 'dwr')
    A.wait_lg('dwr')
    for o in range(3):
        for f in range(4):
            for hlf in range(2):
                src = BH + (o * 4 + f) * 2 + hlf
                I('v_cndmask_b32 v%d, 0, v%d, %s' % (ac(o, f) + 2 * hlf, src, sp(sMc4)))
                I('v_cndmask_b32 v%d, v%d, 0, %s' % (ac(o, f) + 2 * hlf + 1, src, sp(sMc4)))
    stamp('Aconv')
    I('s_mov_b32 s%d, %s' % (sT0, hx(f32(1.0 / 96.0))))
    I('s_mov_b32 s%d, %s' % (sT4, hx(f32(1e-5))))
    I('s_mov_b32 s%d, %s' % (sT5, hx(f32(AS))))
    sInv, sEps, sAs = 96, 97, 68
    I('s_mov_b32 s%d, s%d' % (sInv, sT0)); I('s_mov_b32 s%d, s%d' % (sEps, sT4)); I('s_mov_b32 s%d, s%d' % (sAs, sT5))
    def stats(t):
        s0, q0 = TS, TS + 2
        I('v_pk_add_f32 %s, %s, %s' % (v(s0, 2), v(dc(t, 0), 2), v(dc(t, 0) + 2, 2)))
        I('v_pk_mul_f32 %s, %s, %s' % (v(q0, 2), v(dc(t, 0), 2), v(dc(t, 0), 2)))
        rest = [dc(t, 0) + 2, dc(t, 1), dc(t, 1) + 2, dc(t, 2), dc(t, 2) + 2]
        for k, r in enumerate(rest):
            if k > 0: I('v_pk_add_f32 %s, %s, %s' % (v(s0, 2), v(s0, 2), v(r, 2)))
            I('v_pk_fma_f32 %s, %s, %s, %s' % (v(q0, 2), v(r, 2), v(r, 2), v(q0, 2)))
        I('v_add_f32 v%d, v%d, v%d' % (s0, s0, s0 + 1))
        I('v_add_f32 v%d, v%d, v%d' % (q0, q0, q0 + 1))
        I('v_permlane16_swap_b32 v%d, v%d' % (s0, q0))
        I('v_add_f32 v%d, v%d, v%d' % (s0, s0, q0))
    def stats_w(t): I('ds_write_b32 v%d, v%d offset:%d' % (vStW, TS, 1024 * t), 'stw')
    def fin_r(t, r):
        I('ds_read_b128 %s, v%d offset:%d' % (v(r, 4), vStR, 1024 * t), 'st%d' % t)
        I('ds_read_b128 %s, v%d offset:%d' % (v(r + 4, 4), vStR, 1024 * t + 16), 'st%d' % t)
    def fin(t, r):
        A.wait_lg('st%d' % t)
        I('v_pk_add_f32 %s, %s, %s' % (v(r, 2), v(r, 2), v(r + 2, 2)))
        I('v_pk_add_f32 %s, %s, %s' % (v(r + 4, 2), v(r + 4, 2), v(r + 6, 2)))
        I('v_pk_add_f32 %s, %s, %s' % (v(r, 2), v(r, 2), v(r + 4, 2)))
        I('v_mul_f32 v%d, s%d, v%d' % (r, sInv, r))
        I('v_mul_f32 v%d, s%d, v%d' % (r + 1, sInv, r + 1))
        I('v_fma_f32 v%d, -v%d, v%d, v%d' % (r + 1, r, r, r + 1))
        I('v_max_f32 v%d, 0, v%d' % (r + 1, r + 1))
        I('v_add_f32 v%d, s%d, v%d' % (r + 1, sEps, r + 1))
        I('v_rsq_f32 v%d, v%d' % (r + 1, r + 1))
        I('v_mul_f32 v%d, s%d, v%d' % (r + 2, sAs, r + 1))
        I('v_mul_f32 v%d, -v%d, v%d' % (r + 3, r, r + 2))
        for o in range(3):
            d = dc(t, o)
            for hh in (0, 2):
                I('v_pk_fma_f32 %s, %s, %s, %s op_sel:[0,0,1] op_sel_hi:[1,0,1]' % (v(d + hh, 2), v(d + hh, 2), v(r + 2, 2), v(r + 2, 2)))
            I('v_cvt_pk_bf16_f32 v%d, v%d, v%d' % (d, d, d + 1))
            I('v_cvt_pk_bf16_f32 v%d, v%d, v%d' % (d + 1, d + 2, d + 3))
    def fin_w(t):
        I('s_mov_b64 exec, %s' % sp(sM14))
        for o in range(3):
            I('ds_write_b64 v%d, %s offset:%d' % (vY, v(dc(t, o), 2), YB + 28 * YP * t + 16 * o), 'yw')
        execall()
    def fin_all(ts, rbase):
        for k, t in enumerate(ts): fin(t, rbase + 8 * k)
        for k, t in enumerate(ts): fin_w(t)
    for s in range(9):
        rho = 2 * s; tn = s
        A.wait_vm('x%d' % (rho + 1))
        if (s in (0, 4, 8) and not OPT['st_conv']) or (OPT['st_conv'] and s >= 1): stamp('rows<=%d' % (rho + 1))
        t1 = s - 3
        fins = {7: (0, 1), 8: (2, 3)}.get(s, ())
        for k, t in enumerate(fins): fin_r(t, FN + 8 * k)
        for o in range(3):
            off = rho * XROW + 288 * o
            I('ds_read_b128 %s, v%d offset:%d' % (v(BH + 8 * o, 4), vH, off), 'h%d' % o)
            I('ds_read_b128 %s, v%d offset:%d' % (v(BH + 8 * o + 4, 4), vH, off + XROW), 'h%d' % o)
        if rho >= 4:
            for o in range(3):
                off = (rho - 4) * XROW + 288 * o
                I('ds_read_b128 %s, v%d offset:%d' % (v(BV + 8 * o, 4), vV1, off), 'v%d' % o)
                I('ds_read_b128 %s, v%d offset:%d' % (v(BV + 8 * o + 4, 4), vV2, off), 'v%d' % o)
        def dma_x():
            if xrow_next[0] <= 17:
                exec54(); x_dma(1); execall()
        dma_x()
        if tn <= 6:
            for o in range(3):
                I('v_mov_b64 %s, 0' % v(dc(tn, o), 2)); I('v_mov_b64 %s, 0' % v(dc(tn, o) + 2, 2))
        if s >= 2: w1_dma(1)
        if t1 >= 0: stats(t1)
        dma_x()
        for k, t in enumerate(fins): fin(t, FN + 8 * k)
        if s >= 2: w1_dma(1)
        if t1 >= 0: stats_w(t1)
        for k, t in enumerate(fins): fin_w(t)
        if s == 1: later_setup()
        if s == 2: phaseC_addr()
        if s == 5: clears()
        for o in range(3):
            A.wait_lg('h%d' % o)
            for f in range(3):
                t = tn - f
                if 0 <= t <= 6:
                    I('v_smfmac_f32_16x16x64_bf16 %s, %s, %s, v%d' % (v(dc(t, o), 4), v(ac(o, f), 4), v(BH + 8 * o, 8), vIDX))
            if s >= 2 and o == 1: w1_dma(1)
        if rho >= 4:
            for o in range(3):
                A.wait_lg('v%d' % o)
                I('v_smfmac_f32_16x16x64_bf16 %s, %s, %s, v%d' % (v(dc(tn - 2, o), 4), v(ac(o, 3), 4), v(BV + 8 * o, 8), vIDX))
        if s == 6:
            A.wait_lg(); barrier()
    w1_dma(18)
    stats(6); stats_w(6)
    T = 216 + 4
    I('v_lshrrev_b32 v%d, 4, v1' % T); I('v_bfe_u32 v%d, v1, 2, 2' % (T + 1)); I('v_and_b32 v%d, 3, v1' % (T + 2))
    I('v_lshrrev_b32 v%d, 1, v%d' % (T + 3, T)); I('v_lshl_add_u32 v%d, v%d, 3, v%d' % (T + 3, T + 3, T + 1))
    I('v_mul_u32_u24 v%d, 192, v%d' % (T + 3, T + 3))
    I('v_and_b32 v%d, 1, v%d' % (T + 4, T)); I('v_lshl_add_u32 v%d, v%d, 5, v%d' % (T + 3, T + 4, T + 3))
    I('v_lshl_add_u32 v%d, v%d, 3, v%d' % (T + 3, T + 2, T + 3))
    I('s_mul_i32 s%d, s%d, %d' % (sT1, sW, W1S_W)); I('s_add_u32 s%d, s%d, %d' % (sT1, sT1, W1S))
    I('v_add_u32 v%d, s%d, v%d' % (vW1, sT1, T + 3))
    A.wait_lg(); barrier()
    stamp('conv done')
    FT = 104
    for k, t in enumerate((4, 5, 6)): fin_r(t, FT + 8 * k)
    A.wait_vm()
    for t in range(3):
        for kc in range(6):
            off = kc * 3072 + t * 64
            I('ds_read_b64_tr_b16 %s, v%d offset:%d' % (v(w1f(t, kc), 2), vW1, off), 'w1r')
            I('ds_read_b64_tr_b16 %s, v%d offset:%d' % (v(w1f(t, kc) + 2, 2), vW1, off + 768), 'w1r')
    for k, t in enumerate((4, 5, 6)): fin(t, FT + 8 * k)
    for k, t in enumerate((4, 5, 6)): fin_w(t)
    for t in range(3):
        I('v_mov_b64 %s, 0' % v(SQ + 4 * t, 2)); I('v_mov_b64 %s, 0' % v(SQ + 4 * t + 2, 2))
    phaseC_addr2()
    A.wait_lg(); barrier()

def arrive():
    I('s_cmp_lg_u32 s%d, 0' % sW)
    I('s_cbranch_scc1 L_noarrive')
    I('s_and_b32 s%d, s2, 3' % sT0); I('s_lshl_b32 s%d, s%d, 6' % (sT0, sT0))
    I('v_mov_b32 v%d, s%d' % (TT, sT0)); I('v_mov_b32 v%d, 1' % (TT + 1))
    I('s_mov_b64 exec, 1')
    A.raw('buffer_atomic_add v%d, v%d, %s, 0 offen' % (TT + 1, TT, srd(SDBG)))
    execall()
    A.label('L_noarrive')

W2F = 32
def w2f(T2, cl, b): return W2F + ((T2 * 3 + cl) * 2 + b) * 8
CA = 176
def ca(i, T2): return CA + (i * 3 + T2) * 8
CR = CA + 72
XR = 216
def xr_(q): return XR + 4 * q

def yreads(j, base):
    for kc in range(6):
        if j < 6: I('ds_read_b128 %s, v%d offset:%d' % (a_(base + 4 * kc, 4), vYr, YB + j * 32 * YP + 32 * kc), 'y%d' % j)
        else:     I('ds_read_b128 %s, v%d offset:%d' % (a_(base + 4 * kc, 4), vYrem, YB + 32 * kc), 'y%d' % j)
def mfma1(acc, ybase, t, kc):
    c = '0' if kc == 0 else v(acc, 16)
    return 'v_mfma_f32_32x32x16_bf16 %s, %s, %s, %s' % (v(acc, 16), a_(ybase + 4 * kc, 4), v(w1f(t, kc), 4), c)
def mfmar(t, kc):
    c = '0' if kc == 0 else a_(ACCR, 16)
    return 'v_mfma_f32_32x32x16_bf16 %s, %s, %s, %s' % (a_(ACCR, 16), a_(YR + 4 * kc, 4), v(w1f(t, kc), 4), c)

def gelu(srcs, sq, mf, extra, tail):
    npair = len(srcs); n = 2 * npair
    for i, s in enumerate(srcs): I('v_pk_fma_f32 %s, %s, %s, %s' % (v(TT + 2 * i, 2), v(s, 2), v(s, 2), sp(sK)))
    for i, s in enumerate(srcs): I('v_pk_mul_f32 %s, %s, %s' % (v(TT + 2 * i, 2), v(s, 2), v(TT + 2 * i, 2)))
    m1, m2 = list(mf[:len(mf) // 2]), list(mf[len(mf) // 2:])
    def trans(op, ms):
        for i in range(n):
            if ms and i % 5 == 0: I(ms.pop(0))
            I('%s v%d, v%d' % (op, TT + i, TT + i))
    trans('v_exp_f32', m1)
    for i in range(npair): I('v_pk_add_f32 %s, %s, 1.0 op_sel_hi:[1,0]' % (v(TT + 2 * i, 2), v(TT + 2 * i, 2)))
    trans('v_rcp_f32', m2)
    assert not m1 and not m2
    for i, s in enumerate(srcs): I('v_pk_mul_f32 %s, %s, %s' % (v(TT + 2 * i, 2), v(s, 2), v(TT + 2 * i, 2)))
    for i in range(npair): I('v_pk_fma_f32 %s, %s, %s, %s' % (v(sq[i], 2), v(TT + 2 * i, 2), v(TT + 2 * i, 2), v(sq[i], 2)))
    extra = list(extra)
    for i in range(npair):
        if extra and i % 4 == 0: I(extra.pop(0))
        I('v_cvt_pk_bf16_f32 v%d, v%d, v%d' % (PP + i, TT + 2 * i, TT + 2 * i + 1))
    for m in extra: I(m)
    tail()

def hreads(setidx, sub, Ts):
    for T in Ts:
        for e2 in range(2):
            I('ds_read_b64_tr_b16 %s, v%d offset:%d' % (a_(HM + sub * 48 + T * 4 + 2 * e2, 2), vHR[setidx], T * 4096 + e2 * 1024), 'hr')

def phaseB():
    yreads(0, YA[0])
    A.wait_lg('y0')
    for kc in range(6): I(mfma1(ACC[0], YA[0], 0, kc))
    units = [(j, t) for j in range(6) for t in range(3)]
    xr = [(i, T2) for i in range(3) for T2 in range(3)] + [(3, 0)]
    for u, (j, t) in enumerate(units):
        acc = ACC[u & 1]
        mf = []
        if u + 1 < len(units):
            jn, tn_ = units[u + 1]
            mf = [mfma1(ACC[(u + 1) & 1], YA[jn & 1], tn_, kc) for kc in range(6)]
        extra = []
        if u >= 12:
            rt = (u - 12) // 2; k0 = 3 * ((u - 12) & 1)
            extra = [mfmar(rt, k0 + k) for k in range(3)]
        i = j // 2; jp = j & 1
        def tail(u=u, j=j, t=t, i=i, jp=jp):
            st = i & 1
            if jp == 0 and t == 0 and i >= 1:
                A.wait_lg(); barrier()
            if t == 0 and j < 5: yreads(j + 1, YA[(j + 1) & 1])
            if u == 10: yreads(6, YR)
            if i >= 1:
                k = 3 * jp + t
                hreads((i - 1) & 1, i - 1, (2 * k, 2 * k + 1))
            I('ds_write_b128 v%d, %s offset:%d' % (vHW[jp][0], v(PP, 4), t * 4096 + st * SETSZ), 'hw')
            I('ds_write_b128 v%d, %s offset:%d' % (vHW[jp][1], v(PP + 4, 4), t * 4096 + st * SETSZ), 'hw')
            if 6 <= u < 16:
                ii, T2 = xr[u - 6]
                if ii < 3: I('buffer_load_dwordx4 %s, v%d, %s, 0 offen offset:%d' % (v(xr_(ii * 3 + T2), 4), vOut[ii], srd(SX), 64 * T2), 'xr')
                else: I('buffer_load_dwordx4 %s, v%d, %s, 0 offen' % (v(xr_(9), 4), vOut[3], srd(SX)), 'xr')
            if u == 16: I('buffer_load_dword v%d, v%d, %s, 0 offen sc1' % (vChk, vChkA, srd(SDBG)), 'chk')
            if t == 1 and j < 5: A.wait_lg('y%d' % (j + 1))
            if u == 11: A.wait_lg('y6')
        if u in (14, 16):
            rt = (u - 14) // 2
            pre = ['v_accvgpr_read_b32 v%d, a%d' % (RS + 2 * rt, ACCR), 'v_accvgpr_read_b32 v%d, a%d' % (RS + 2 * rt + 1, ACCR + 1)]
            for p in pre: I(p)
        def tail2(tail=tail, u=u):
            tail()
        gelu([acc + 2 * k for k in range(8)], [SQ + 4 * t + 2 * (k & 1) for k in range(8)], mf, extra, tail)
        if u in (5, 17) and not OPT['st_conv'] and not OPT['st_pro']: stamp('unit %d' % u)
    I('v_accvgpr_read_b32 v%d, a%d' % (RS + 4, ACCR)); I('v_accvgpr_read_b32 v%d, a%d' % (RS + 5, ACCR + 1))
    def rtail():
        for t in range(3): I('ds_write_b32 v%d, v%d offset:%d' % (vRemW, PP + t, REM + 256 * t), 'rw')
    gelu([RS, RS + 2, RS + 4], [SQ, SQ + 4, SQ + 8], [], [], rtail)

def publish():
    for t in range(3):
        s = SQ + 4 * t
        I('v_pk_add_f32 %s, %s, %s' % (v(s, 2), v(s, 2), v(s + 2, 2)))
        I('v_add_f32 v%d, v%d, v%d' % (s, s, s + 1))
    I('v_mov_b32 v%d, v%d' % (SQ + 9, SQ + 8))
    I('v_permlane32_swap_b32 v%d, v%d' % (SQ, SQ + 4))
    I('v_permlane32_swap_b32 v%d, v%d' % (SQ + 8, SQ + 9))
    I('v_add_f32 v%d, v%d, v%d' % (SQ, SQ, SQ + 4))
    I('v_add_f32 v%d, v%d, v%d' % (SQ + 8, SQ + 8, SQ + 9))
    I('v_and_b32 v%d, 0x7fffffff, v%d' % (TT, SQ))
    I('v_and_b32 v%d, 0x7fffffff, v%d' % (TT + 4, SQ + 8))
    I('s_mul_i32 s%d, s2, 1536' % sT0); I('s_mul_i32 s%d, s%d, 384' % (sT1, sW)); I('s_add_u32 s%d, s%d, s%d' % (sT0, sT0, sT1))
    I('v_lshlrev_b32 v%d, 2, v1' % (TT + 8)); I('v_add_u32 v%d, s%d, v%d' % (TT + 8, sT0, TT + 8))
    for b in (TT, TT + 4):
        for k in (1, 2, 3):
            I('v_mov_b32_dpp v%d, v%d quad_perm:[%d,%d,%d,%d] row_mask:0xf bank_mask:0xf' % (b + k, b, k, k, k, k))
    A.wait_vm('chk')
    I('v_cmp_ne_u32 vcc, 64, v%d' % vChk)
    I('s_cbranch_vccz L_chk_done')
    I('s_mov_b32 s%d, %d' % (sCnt, SPIN))
    A.label('L_chk')
    A.raw('buffer_load_dword v%d, v%d, %s, 0 offen sc1' % (vChk, vChkA, srd(SDBG)))
    A.raw('s_waitcnt vmcnt(0)')
    I('v_cmp_ne_u32 vcc, 64, v%d' % vChk)
    I('s_cbranch_vccz L_chk_done')
    I('s_sleep 1')
    I('s_sub_u32 s%d, s%d, 1' % (sCnt, sCnt)); I('s_cmp_lg_u32 s%d, 0' % sCnt)
    I('s_cbranch_scc1 L_chk')
    A.label('L_chk_done')
    I('s_mov_b32 exec_lo, 0x11111111'); I('s_mov_b32 exec_hi, 0x11111111')
    I('buffer_store_dwordx4 %s, v%d, %s, 0 offen sc1' % (v(TT, 4), TT + 8, srd(SWS)), 'pub')
    I('s_mov_b32 exec_hi, 0')
    I('buffer_store_dwordx4 %s, v%d, %s, 0 offen offset:256 sc1' % (v(TT + 4, 4), TT + 8, srd(SWS)), 'pub')
    execall()

def reducer():
    I('s_cmp_ge_u32 s2, %d' % NRED)
    I('s_cbranch_scc1 L_nored')
    B = 32; X = 56
    I('v_lshrrev_b32 v%d, 2, v1' % X); I('s_lshl_b32 s%d, s%d, 6' % (sT0, sW)); I('v_add_u32 v%d, s%d, v%d' % (X, sT0, X))
    I('v_mul_u32_u24 v%d, 1536, v%d' % (X, X))
    I('v_and_b32 v%d, 3, v1' % (X + 1)); I('v_lshlrev_b32 v%d, 4, v%d' % (X + 1, X + 1))
    I('s_lshl_b32 s%d, s2, 6' % sT1); I('v_add3_u32 v%d, v%d, v%d, s%d' % (X, X, X + 1, sT1))
    I('s_mov_b32 s%d, %d' % (sT2, 16 * 1536)); I('s_mov_b32 s%d, %d' % (sT3, 32 * 1536)); I('s_mov_b32 s%d, %d' % (sT4, 48 * 1536))
    I('s_mov_b32 s%d, %d' % (sCnt, SPIN))
    A.label('L_red')
    for k, so in enumerate(['0', 's%d' % sT2, 's%d' % sT3, 's%d' % sT4]):
        A.raw('buffer_load_dwordx4 %s, v%d, %s, %s offen sc1' % (v(B + 4 * k, 4), X, srd(SWS), so))
    A.raw('s_waitcnt vmcnt(0)')
    I('v_max3_u32 v%d, v%d, v%d, v%d' % (X + 2, B, B + 1, B + 2))
    for k in range(3, 15, 2): I('v_max3_u32 v%d, v%d, v%d, v%d' % (X + 2, X + 2, B + k, B + k + 1))
    I('v_max_u32 v%d, v%d, v%d' % (X + 2, X + 2, B + 15))
    I('v_cmp_eq_u32 vcc, -1, v%d' % (X + 2))
    I('s_cbranch_vccz L_red_got')
    I('s_sub_u32 s%d, s%d, 1' % (sCnt, sCnt)); I('s_cmp_lg_u32 s%d, 0' % sCnt)
    I('s_cbranch_scc1 L_red')
    A.label('L_red_got')
    for k in (0, 2):
        I('v_pk_add_f32 %s, %s, %s' % (v(B + k, 2), v(B + k, 2), v(B + 4 + k, 2)))
        I('v_pk_add_f32 %s, %s, %s' % (v(B + 8 + k, 2), v(B + 8 + k, 2), v(B + 12 + k, 2)))
    for k in (0, 2): I('v_pk_add_f32 %s, %s, %s' % (v(B + k, 2), v(B + k, 2), v(B + 8 + k, 2)))
    for ror in (4, 8):
        for k in range(4): I('v_add_f32_dpp v%d, v%d, v%d row_ror:%d row_mask:0xf bank_mask:0xf' % (B + k, B + k, B + k, ror))
    for sw in ('16', '32'):
        for k in range(4): I('v_mov_b32 v%d, v%d' % (B + 4 + k, B + k))
        for k in range(4): I('v_permlane%s_swap_b32 v%d, v%d' % (sw, B + 4 + k, B + k))
        for k in range(4): I('v_add_f32 v%d, v%d, v%d' % (B + k, B + k, B + 4 + k))
    I('v_and_b32 v%d, 3, v1' % (X + 1)); I('v_lshlrev_b32 v%d, 4, v%d' % (X + 1, X + 1))
    I('s_lshl_b32 s%d, s%d, 6' % (sT0, sW)); I('s_add_u32 s%d, s%d, %d' % (sT0, sT0, REDB))
    I('v_add_u32 v%d, s%d, v%d' % (X + 2, sT0, X + 1))
    I('s_mov_b64 exec, 15')
    I('ds_write_b128 v%d, %s' % (X + 2, v(B, 4)))
    execall()
    A.wait_lg(); barrier()
    I('s_cmp_lg_u32 s%d, 0' % sW)
    I('s_cbranch_scc1 L_nored')
    I('v_add_u32 v%d, %d, v%d' % (X + 2, REDB, X + 1))
    for k in range(4): I('ds_read_b128 %s, v%d offset:%d' % (v(B + 4 * k, 4), X + 2, 64 * k))
    A.wait_lg()
    for k in (0, 2):
        I('v_pk_add_f32 %s, %s, %s' % (v(B + k, 2), v(B + k, 2), v(B + 4 + k, 2)))
        I('v_pk_add_f32 %s, %s, %s' % (v(B + 8 + k, 2), v(B + 8 + k, 2), v(B + 12 + k, 2)))
    for k in (0, 2): I('v_pk_add_f32 %s, %s, %s' % (v(B + k, 2), v(B + k, 2), v(B + 8 + k, 2)))
    for k in range(4): I('v_and_b32 v%d, 0x7fffffff, v%d' % (B + k, B + k))
    I('v_lshrrev_b32 v%d, 2, v1' % X); I('v_mul_u32_u24 v%d, 1536, v%d' % (X, X))
    I('s_lshl_b32 s%d, s2, 6' % sT1); I('s_add_u32 s%d, s%d, %d' % (sT1, sT1, WS_TOT))
    I('v_add3_u32 v%d, v%d, v%d, s%d' % (X, X, X + 1, sT1))
    A.raw('buffer_store_dwordx4 %s, v%d, %s, 0 offen sc1' % (v(B, 4), X, srd(SWS)))
    A.label('L_nored')
    I('s_nop 1')

vArRem, vW2sW, vPoll, vSw, vAr2 = 2, 3, 4, 5, 6
vFac_c, vAr_c, vPoll2_c = 7, 8, 9
vTot = 16; vG = 24
def slot(k): return W2F + 8 * k
G2 = 200
def wait_issue():
    I('s_mul_i32 s%d, s%d, %d' % (sT0, sW, W2RAW_W)); I('s_add_u32 s%d, s%d, %d' % (sT1, sT0, W2RAW))
    for k in range(18):
        I('s_mov_b32 m0, s%d' % sT1)
        I('buffer_load_dwordx4 v%d, %s, s%d offen lds' % (vAr, srd(SW2), sT0), 'w2')
        if k < 17:
            I('s_add_u32 s%d, s%d, 1024' % (sT1, sT1)); I('s_add_u32 s%d, s%d, 1024' % (sT0, sT0))
    I('v_lshlrev_b32 v%d, 3, v1' % TT)
    I('buffer_load_dwordx2 %s, v%d, %s, 0 offen' % (v(G2 + 2, 2), TT, srd(SG)), 'g')
    I('buffer_load_dwordx2 %s, v%d, %s, 0 offen offset:512' % (v(G2 + 6, 2), TT, srd(SG)), 'g')
    for cl in range(3):
        I('buffer_load_dwordx2 %s, v%d, %s, 0 offen offset:%d' % (v(BFR[cl], 2), vBa, srd(SB), 64 * cl), 'b')
        I('buffer_load_dwordx2 %s, v%d, %s, 0 offen offset:%d' % (v(BFR[cl] + 2, 2), vBa, srd(SB), 64 * cl + 16), 'b')

BFR = [slot(9), slot(10), slot(11)]

def wait_compute():
    hreads(0, 2, range(12))
    for T in range(12):
        for e2 in range(2):
            I('ds_read_b64_tr_b16 %s, v%d offset:%d' % (a_(HR + T * 4 + 2 * e2, 2), vRemR, REM + T * 256 + e2 * 64), 'rr')
    A.wait_vm('g')
    I('s_mov_b32 s%d, %s' % (sT0, hx(f32(1.0 / AS))))
    for base in (G2, G2 + 4):
        for k in range(2):
            I('v_lshlrev_b32 v%d, 16, v%d' % (base + 2 * k, base + 2 + k))
            I('v_and_b32 v%d, 0xffff0000, v%d' % (base + 2 * k + 1, base + 2 + k))
        for k in range(4): I('v_mul_f32 v%d, s%d, v%d' % (base + k, sT0, base + k))
    A.wait_vm('w2')
    for T2 in range(3):
        for cl in range(3):
            for b in range(2):
                off = cl * 32 * 192 + 64 * T2 + 8 * b
                I('ds_read_b64_tr_b16 %s, v%d offset:%d' % (v(w2f(T2, cl, b) + 4, 2), vW2r, off), 'w2r')
                I('ds_read_b64_tr_b16 %s, v%d offset:%d' % (v(w2f(T2, cl, b) + 6, 2), vW2r, off + 8 * 192), 'w2r')
    I('s_mul_i32 s%d, s%d, %d' % (sT0, sW, 6 * 1024)); I('v_add_u32 v%d, s%d, v%d' % (vW2sW, sT0, vAr))
    I('s_mul_i32 s%d, s%d, %d' % (sT0, sRT, 24 * 1024)); I('v_add_u32 v%d, s%d, v%d' % (vArRem, sT0, vAr))
    I('v_add_u32 v%d, 49152, v%d' % (vAr2, vAr))
    I('v_add_u32 v%d, s%d, v%d' % (vPoll, sPoll, vAr))
    I('v_add_u32 v%d, %d, v%d' % (vSw, SFAC, vAr))
    SEL = 16
    I('v_and_b32 v7, 15, v1'); I('v_lshrrev_b32 v8, 4, v1'); I('v_lshrrev_b32 v9, 2, v7')
    I('v_and_b32 v10, 1, v7'); I('v_lshlrev_b32 v10, 4, v10'); I('v_mov_b32 v11, 0x3f80'); I('v_lshlrev_b32 v10, v10, v11')
    I('v_cmp_eq_u32 vcc, v8, v9'); I('v_cndmask_b32 v10, 0, v10, vcc')
    I('v_and_b32 v9, 2, v7'); I('v_cmp_eq_u32 vcc, 0, v9')
    I('v_mov_b32 v%d, 0' % SEL); I('v_mov_b32 v%d, 0' % (SEL + 1)); I('v_mov_b32 v%d, 0' % (SEL + 4)); I('v_mov_b32 v%d, 0' % (SEL + 5))
    I('v_cndmask_b32 v%d, 0, v10, vcc' % (SEL + 2)); I('v_cndmask_b32 v%d, v10, 0, vcc' % (SEL + 3))
    A.wait_vm('b')
    A.wait_lg()
    def bt(T2, b): return slot(T2 * 2 + b)
    for cl in range(3):
        for T2 in range(3):
            for b in range(2):
                d = bt(T2, b)
                I('v_mfma_f32_16x16x32_bf16 %s, %s, %s, %s' % (v(d, 4), v(w2f(T2, cl, b) + 4, 4), v(BFR[cl], 4), '0' if cl == 0 else v(d, 4)))
    I('s_mul_i32 s%d, s%d, 384' % (sT0, sW)); I('s_add_u32 s%d, s%d, %d' % (sT0, sT0, BIASP))
    I('v_add_u32 v7, s%d, v%d' % (sT0, vBp))
    I('v_add_u32 v%d, %d, v%d' % (vBp, BIASP, vBp))
    I('s_mov_b32 exec_lo, 0x00010001'); I('s_mov_b32 exec_hi, 0x00010001')
    for T2 in range(3):
        for b in range(2): I('ds_write_b128 v7, %s offset:%d' % (v(bt(T2, b), 4), T2 * 128 + 16 * b))
    execall()
    def unpack8(base):
        for k in range(4):
            I('v_lshlrev_b32 v%d, 16, v%d' % (base + 2 * k, base + 4 + k))
            I('v_and_b32 v%d, 0xffff0000, v%d' % (base + 2 * k + 1, base + 4 + k))
    A.wait_lg(); barrier()
    tmp = [slot(6 + k) for k in range(12)]
    for half in range(2):
        tiles = [(T2, b) for T2 in range(3) for b in range(2)][3 * half:3 * half + 3]
        for q, (T2, b) in enumerate(tiles):
            for w in range(4):
                I('ds_read_b128 %s, v%d offset:%d' % (v(tmp[q * 4 + w], 4), vBp, w * 384 + T2 * 128 + 16 * b), 'bp%d' % q)
        for q, (T2, b) in enumerate(tiles):
            A.wait_lg('bp%d' % q)
            d = bt(T2, b)
            for hh in (0, 2):
                I('v_pk_add_f32 %s, %s, %s' % (v(d + hh, 2), v(tmp[q * 4] + hh, 2), v(tmp[q * 4 + 1] + hh, 2)))
                I('v_pk_add_f32 %s, %s, %s' % (v(tmp[q * 4 + 2] + hh, 2), v(tmp[q * 4 + 2] + hh, 2), v(tmp[q * 4 + 3] + hh, 2)))
                I('v_pk_add_f32 %s, %s, %s' % (v(d + hh, 2), v(d + hh, 2), v(tmp[q * 4 + 2] + hh, 2)))
    I('v_mov_b32 v%d, v%d' % (vFac_c, vFac)); I('v_mov_b32 v%d, v%d' % (vAr_c, vAr)); I('v_mov_b32 v%d, v%d' % (vPoll2_c, vPoll2))
    for k in range(8): I('v_mov_b32 v%d, v%d' % (vG + k, G2 + k))
    A.wait_vm('xr')
    for k in range(4): I('v_mov_b32 v%d, v%d' % (slot(6) + k, xr_(9) + k))
    def cinit(d, x, cb):
        I('v_mfma_f32_16x16x32_bf16 %s, %s, %s, %s' % (v(d, 4), v(SEL + 2, 4), v(x, 4), v(cb[0], 4)))
        I('v_mfma_f32_16x16x32_bf16 %s, %s, %s, %s' % (v(d + 4, 4), v(SEL, 4), v(x, 4), v(cb[1], 4)))
    for i in range(3):
        for T2 in range(3): cinit(ca(i, T2), xr_(i * 3 + T2), (bt(T2, 0), bt(T2, 1)))
    for T2 in range(3):
        I('s_cmp_lg_u32 s%d, %d' % (sRT, T2))
        I('s_cbranch_scc1 L_rb%d' % T2)
        cinit(CR, slot(6), (bt(T2, 0), bt(T2, 1)))
        A.label('L_rb%d' % T2)
    for T2 in (1, 2, 0):
        for cl in range(3):
            for b in range(2): unpack8(w2f(T2, cl, b))

def totals():
    X0, X1, X2 = 10, 11, 0
    I('s_cmp_lg_u32 s%d, 0' % sW)
    I('s_cbranch_scc1 L_tot_done')
    I('s_mov_b32 s%d, %d' % (sCnt, SPIN))
    A.label('L_tot')
    A.raw('buffer_load_dwordx4 %s, v%d, %s, 0 offen sc1' % (v(vTot, 4), vPoll, srd(SWS)))
    A.raw('buffer_load_dwordx4 %s, v%d, %s, 0 offen offset:1024 sc1' % (v(vTot + 4, 4), vPoll2_c, srd(SWS)))
    A.raw('s_waitcnt vmcnt(0)')
    I('v_max3_u32 v%d, v%d, v%d, v%d' % (X0, vTot, vTot + 1, vTot + 2))
    I('v_max3_u32 v%d, v%d, v%d, v%d' % (X0, X0, vTot + 3, vTot + 4))
    I('v_max3_u32 v%d, v%d, v%d, v%d' % (X0, X0, vTot + 5, vTot + 6))
    I('v_max_u32 v%d, v%d, v%d' % (X0, X0, vTot + 7))
    I('v_cmp_eq_u32 vcc, -1, v%d' % X0)
    I('s_cbranch_vccz L_tot_got')
    I('s_sub_u32 s%d, s%d, 1' % (sCnt, sCnt)); I('s_cmp_lg_u32 s%d, 0' % sCnt)
    I('s_cbranch_scc1 L_tot')
    A.label('L_tot_got')
    stamp('totals got')
    I('s_mov_b32 s%d, %s' % (sT0, hx(f32(1.0 / (AS * AS)))))
    I('s_mov_b32 s%d, %s' % (sT1, hx(f32(1e-6))))
    I('v_mov_b32 v%d, s%d' % (X0, sT1))
    for k in range(8): I('v_fma_f32 v%d, v%d, s%d, v%d' % (vTot + k, vTot + k, sT0, X0))
    for k in range(8): I('v_sqrt_f32 v%d, v%d' % (vTot + k, vTot + k))
    I('v_add_f32 v%d, v%d, v%d' % (X1, vTot + 4, vTot + 5)); I('v_add_f32 v%d, v%d, v%d' % (X2, vTot + 6, vTot + 7))
    I('v_add_f32 v%d, v%d, v%d' % (X1, X1, X2))
    I('v_cmp_gt_u32 vcc, 32, v1')
    I('v_cndmask_b32 v%d, 0, v%d, vcc' % (X1, X1))
    I('v_add_f32 v%d, v%d, v%d' % (X2, vTot, vTot + 1)); I('v_add_f32 v%d, v%d, v%d' % (X1, X1, X2))
    I('v_add_f32 v%d, v%d, v%d' % (X2, vTot + 2, vTot + 3)); I('v_add_f32 v%d, v%d, v%d' % (X1, X1, X2))
    for ctl in ('row_shr:1', 'row_shr:2', 'row_shr:4', 'row_shr:8'):
        I('v_add_f32_dpp v%d, v%d, v%d %s row_mask:0xf bank_mask:0xf bound_ctrl:1' % (X1, X1, X1, ctl))
    I('v_add_f32_dpp v%d, v%d, v%d row_bcast:15 row_mask:0xa bank_mask:0xf' % (X1, X1, X1))
    I('v_add_f32_dpp v%d, v%d, v%d row_bcast:31 row_mask:0xc bank_mask:0xf' % (X1, X1, X1))
    I('v_readlane_b32 s%d, v%d, 63' % (sT2, X1))
    I('s_mov_b32 s%d, %s' % (sT0, hx(f32(1.0 / 384.0))))
    I('v_mov_b32 v%d, s%d' % (X1, sT2))
    I('v_fma_f32 v%d, v%d, s%d, v%d' % (X0, X1, sT0, X0))
    I('v_rcp_f32 v%d, v%d' % (X0, X0))
    I('s_mov_b32 s%d, %s' % (sT0, hx(f32(1.0 / AS))))
    I('v_mov_b32 v%d, s%d' % (X1, sT0))
    for k in range(8): I('v_mul_f32 v%d, v%d, v%d' % (vTot + k, vTot + k, X0))
    for k in range(8): I('v_fma_f32 v%d, v%d, v%d, v%d' % (vTot + k, vTot + k, vG + k, X1))
    I('ds_write_b128 v%d, %s' % (vSw, v(vTot, 4)))
    I('s_mov_b32 exec_hi, 0')
    I('ds_write_b128 v%d, %s offset:1024' % (vSw, v(vTot + 4, 4)))
    execall()
    A.wait_lg()
    A.label('L_tot_done')
    barrier()

FAC = [16, 24, 40]
def fac_read(cl):
    I('ds_read_b128 %s, v%d offset:%d' % (v(FAC[cl], 4), vFac_c, cl * 128), 'f%d' % cl)
    I('ds_read_b128 %s, v%d offset:%d' % (v(FAC[cl] + 4, 4), vFac_c, cl * 128 + 32), 'f%d' % cl)
def scale_frag(T2, cl, b, packed):
    r = w2f(T2, cl, b); F = FAC[cl]; out = []
    if packed:
        for k in range(4): out.append((4, 'v_pk_mul_f32 %s, %s, %s' % (v(r + 2 * k, 2), v(r + 2 * k, 2), v(F + 2 * k, 2))))
    else:
        for k in range(8): out.append((4, 'v_mul_f32 v%d, v%d, v%d' % (r + k, r + k, F + k)))
    for k in range(4): out.append((4, 'v_cvt_pk_bf16_f32 v%d, v%d, v%d' % (r + k, r + 2 * k, r + 2 * k + 1)))
    out.append((20, 'ds_write_b128 v%d, %s offset:%d' % (vW2sW, v(r, 4), ((T2 * 12 + cl) * 2 + b) * 1024), 'sw'))
    return out

def scale_first():
    fac_read(0); fac_read(1)
    order = [(0, 0), (0, 1), (1, 0), (1, 1), (2, 0), (2, 1)]
    for q, (cl, b) in enumerate(order):
        if b == 0: A.wait_lg('f%d' % cl)
        for it in scale_frag(0, cl, b, True): I(it[1], it[2] if len(it) > 2 else None)
        if q == 1: fac_read(2)
    A.wait_lg(); barrier()

def phaseC():
    AB = [48, 56, 64, 72]
    seq = []
    for T2 in (0, 1): seq += [('m', T2, c) for c in range(12)]
    seq += [('r', 0, c) for c in range(12)]
    seq += [('m', 2, c) for c in range(12)]
    def rd(k):
        kind, T2, c = seq[k]; buf = AB[k % 4]
        if kind == 'm':
            lo = (T2 * 12 + c) * 2048; r = vAr_c
            if lo >= 49152: r = vAr2; lo -= 49152
        else: lo = c * 2048; r = vArRem
        I('ds_read_b128 %s, v%d offset:%d' % (v(buf, 4), r, lo), 'a%d' % k)
        I('ds_read_b128 %s, v%d offset:%d' % (v(buf + 4, 4), r, lo + 1024), 'a%d' % k)
    fill = []; wq = []
    def epi(regs, addr, off):
        out = [(4, 'v_cvt_pk_bf16_f32 v%d, v%d, v%d' % (regs + k, regs + 2 * k, regs + 2 * k + 1)) for k in range(4)]
        out.append((8, 'buffer_store_dwordx4 %s, v%d, %s, 0 offen offset:%d' % (v(regs, 4), addr, srd(SOUT), off), 'st'))
        return out
    def emit_fill(budget):
        while fill and budget > 0:
            it = fill.pop(0)
            if callable(it): it(); continue
            if it[1].startswith('ds_write'):
                wq.append(it); continue
            I(it[1], it[2] if len(it) > 2 else None); budget -= it[0]
    def emit_writes():
        while wq:
            it = wq.pop(0); I(it[1], it[2])
    for k in range(3): rd(k)
    pending = []
    for k, (kind, T2, c) in enumerate(seq):
        if kind == 'm' and c == 0 and T2 < 2:
            for cl in range(3):
                for b in range(2): fill += scale_frag(T2 + 1, cl, b, False)
        if kind == 'm' and c == 9 and T2 < 2:
            emit_fill(10 ** 6); emit_writes()
            A.wait_lg('sw'); barrier()
        if k + 3 < len(seq): rd(k + 3)
        emit_writes()
        A.wait_lg('a%d' % k)
        buf = AB[k % 4]
        ms = []
        if kind == 'm':
            for i in range(3):
                for b in range(2):
                    d = ca(i, T2) + 4 * b
                    ms.append('v_mfma_f32_16x16x32_bf16 %s, %s, %s, %s' % (v(d, 4), v(buf + 4 * b, 4), a_(HM + i * 48 + c * 4, 4), v(d, 4)))
        else:
            for b in range(2):
                d = CR + 4 * b
                ms.append('v_mfma_f32_16x16x32_bf16 %s, %s, %s, %s' % (v(d, 4), v(buf + 4 * b, 4), a_(HR + c * 4, 4), v(d, 4)))
        for m in ms:
            I(m); emit_fill(8)
        if c == 11:
            if kind == 'm': pend = [epi(ca(i, T2), vOut[i], 64 * T2) for i in range(3)]
            else:
                def remstore():
                    I('s_cmp_eq_u32 s%d, 3' % sW)
                    I('s_cbranch_scc1 L_norem')
                    for kk in range(4): I('v_cvt_pk_bf16_f32 v%d, v%d, v%d' % (CR + kk, CR + 2 * kk, CR + 2 * kk + 1))
                    I('s_mov_b32 exec_lo, 0x000f000f'); I('s_mov_b32 exec_hi, 0x000f000f')
                    I('buffer_store_dwordx4 %s, v%d, %s, 0 offen' % (v(CR, 4), vOut[3], srd(SOUT)), 'st')
                    execall()
                    A.label('L_norem')
                pend = [[remstore]]
            pending = [x for p in pend for x in p]
        if c == 1 and k > 12 and pending:
            fill[0:0] = pending; pending = []
    for it in pending:
        if callable(it): it()
        else: I(it[1], it[2] if len(it) > 2 else None)

def dump_stamps():
    if not STAMPS: return
    I('s_waitcnt lgkmcnt(0)')
    I('s_cmp_lg_u32 s%d, 0' % sW)
    I('s_cbranch_scc1 L_end')
    I('s_lshl_b32 s%d, s2, 7' % sT0); I('s_add_u32 s%d, s%d, %d' % (sT0, sT0, WS_DBG))
    I('v_mov_b32 v12, s%d' % sT0)
    I('s_mov_b64 exec, 1')
    for k in range(nst[0]):
        I('v_mov_b32 v13, s%d' % (sStamp + k))
        I('buffer_store_dword v13, v12, %s, 0 offen offset:%d' % (srd(SWS), 4 * k))
    execall()

def main():
    prologue()
    if OPT['st_pro']: stamp('prologue end')
    conv_setup()
    if OPT['st_pro']: stamp('conv_setup')
    conv()
    arrive()
    stamp('phaseB start')
    phaseB()
    publish()
    if not OPT['st_conv']: stamp('published')
    A.wait_lg(); barrier()
    wait_issue()
    if not OPT['st_conv'] and not OPT['st_pro']: stamp('wait issued')
    reducer()
    wait_compute()
    if not OPT['st_conv']: stamp('waitwork done')
    totals()
    scale_first()
    if not OPT['st_conv'] and not OPT['st_pro']: stamp('scaled')
    phaseC()
    stamp('done')
    dump_stamps()
    A.label('L_end')
    I('s_endpgm')
    A.label('L_code_end')
    nn = A.fix_hazards()
    hdr = open('cdna_kernels/%s.s.ref' % NAME).read().split('; Override launch')[0]
    s = hdr
    s += "; Override launch geometry by editing the next line (default: block=256,\n"
    s += "; @launch grid=(256,1,1) block=(256,1,1) lds=%d\n" % LDS_BYTES
    s += "; Fused dwconv5x5 + LayerNorm + GEMM + GELU + GRN + GEMM; persistent, one workgroup (14x14 pixels) per CU.\n"
    s += '.amdgcn_target "amdgcn-amd-amdhsa--gfx950"\n.text\n.globl %s_kernel\n.p2align 8\n.type %s_kernel,@function\n%s_kernel:\n' % (NAME, NAME, NAME)
    body = A.text()
    if OPT['pref']: body = body.replace('CODE_LAST', '(L_code_end - L_pc - 4)')
    s += body
    s += '''.section .rodata,"a"
.p2align 6
.amdhsa_kernel %s_kernel
  .amdhsa_next_free_vgpr 512
  .amdhsa_next_free_sgpr 102
  .amdhsa_accum_offset 256
  .amdhsa_group_segment_fixed_size 0
  .amdhsa_kernarg_size 72
  .amdhsa_user_sgpr_count 2
  .amdhsa_user_sgpr_kernarg_segment_ptr 1
  .amdhsa_system_sgpr_workgroup_id_x 1
  .amdhsa_float_denorm_mode_32 3
.end_amdhsa_kernel
''' % NAME
    open(OUT, 'w').write(s)
    if STAMPS: open(OUT + '.names', 'w').write('\n'.join(stamp_names))
    print('instructions', A.count(), 'nops inserted', nn, 'bytes', len(s))
main()
```

```python
import sys, math, struct
from asmlib import Asm

NAME = "standalone__modern_conv_block_slak__vision"
OPT = dict(dbgt=0, st_pro=0, debug=0, stamps=0, pref=1, ahead=8, st_conv=0, x_nofin=0, x_nostats=0, x_now1=0, x_nobar=0, x_nosmf=0)
for a in sys.argv[1:]:
    if '=' in a and not a.startswith('out='):
        k, v_ = a.split('='); OPT[k] = int(v_)
OUT = [a[4:] for a in sys.argv[1:] if a.startswith('out=')]
OUT = OUT[0] if OUT else "cdna_kernels/%s.s" % NAME
DEBUG = OPT['debug']; STAMPS = OPT['stamps']

def f32(x): return struct.unpack('<I', struct.pack('<f', x))[0]
def hx(x): return '0x%08x' % (x & 0xffffffff)

C1 = -2.0 * math.log2(math.e) * math.sqrt(2.0 / math.pi)
C2 = C1 * 0.044715
AS = -((-C2) ** (1.0 / 3.0))
KK = C1 / AS

XROW = 3584
XS = 0
DWS = 18 * XROW;   DWS_W = 1280
W1S = DWS + 4 * DWS_W;   W1S_W = 18432
STATS = W1S + 4 * W1S_W
YB = 0;            YP = 208
RING = 40960;      SETSZ = 49152
REM = 0
W2RAW = 90112;     W2RAW_W = 18432
W2S = 0
SFAC = 73728
BIASP = 4096
REDB = 8192
LDS_BYTES = 163840
assert STATS + 7168 <= LDS_BYTES
WS_PART = 0; WS_TOT = 0x80000; WS_DBG = 0x100000
NREP = 16; NRED = 24
SPIN = 400000

sW = 22
SX, SDW, SW1, SW2, SOUT, SWS, SDBG, SG, SB = 24, 28, 32, 36, 40, 44, 48, 52, 56
sGY0, sGX0 = 60, 61
sT0, sT1, sT2, sT3, sT4, sT5 = 62, 63, 64, 65, 66, 67
sEX = 68
sMc4 = 70; sM14 = 72; sK = 74
sTY, sTX = 76, 77
sCnt = 78; sRT = 79
sPoll = 69
sStamp = 80
sXM, sXO = 23, 3
sW1M, sW1O = 100, 101
def srd(b): return 's[%d:%d]' % (b, b + 3)
def sp(b): return 's[%d:%d]' % (b, b + 1)
def v(b, n=1): return 'v%d' % b if n == 1 else 'v[%d:%d]' % (b, b + n - 1)
def a_(b, n=1): return 'a%d' % b if n == 1 else 'a[%d:%d]' % (b, b + n - 1)

A = Asm(); I = A
nst = [0]; stamp_names = []
def stamp(name=''):
    if STAMPS:
        k = nst[0]; nst[0] += 1
        assert k < 16
        stamp_names.append(name)
        A.wait_lg()
        I('%s %s' % ('s_memtime' if STAMPS == 2 else 's_memrealtime', sp(98)))
        I('s_waitcnt lgkmcnt(0)')
        I('s_mov_b32 s%d, s98' % (sStamp + k))
def barrier(): I('s_barrier')

vYr, vYrem = 2, 3
vHW = [[4, 5], [6, 7]]
vHR = [8, 9]
vRemW, vRemR = 10, 11
vOut = [12, 13, 14, 15]
vH, vV1, vV2, vStW, vStR, vY = 16, 17, 18, 19, 20, 21
vW1 = 22
vChk = 30; vChkA = 31
vAr, vFac, vW2r, vBp, vPoll2, vBa = 23, 24, 25, 26, 27, 28
vXo = 240; vW1o = [241, 242, 243]; vPf = 244; vPfD = 245
AC = 32; vIDX = 80; BH = 84; BV = 108; DC = 132; TS = 216; FN = 224
def ac(o, f): return AC + (o * 4 + f) * 4
def dc(t, o): return DC + (t * 3 + o) * 4
W1F = 32
def w1f(t, kc): return W1F + (t * 6 + kc) * 4
ACC = [104, 120]; TT = 136; PP = 152; SQ = 160; RS = 172
YA = [192, 216]; HM = 0; HR = 144; YR = 144; ACCR = 240

def mk(b, p, n):
    I('s_mov_b32 s%d, s%d' % (b, p)); I('s_and_b32 s%d, s%d, 0xffff' % (b + 1, p + 1))
    I('s_mov_b32 s%d, %s' % (b + 2, hx(n))); I('s_mov_b32 s%d, 0x20000' % (b + 3))

xrow_next = [0]
def x_dma(n):
    for _ in range(n):
        r = xrow_next[0]
        if r > 17: return
        xrow_next[0] += 1
        I('s_mov_b32 m0, s%d' % sXM)
        if r < 2:
            I('s_cmp_lt_i32 s%d, 0' % sXO)
            I('s_cselect_b32 s%d, 2.0, s%d' % (sT3, sXO)); so = sT3
        else: so = sXO
        I('buffer_load_dwordx4 v%d, %s, s%d offen lds' % (vXo, srd(SX), so), 'x%d' % r)
        if r < 17:
            I('s_add_u32 s%d, s%d, %d' % (sXM, sXM, XROW)); I('s_add_u32 s%d, s%d, 43008' % (sXO, sXO))
def exec54(): I('s_mov_b32 exec_hi, 0x003fffff')
def execall(): I('s_mov_b64 exec, -1')
w1_next = [0]
def w1_dma(n):
    for _ in range(n):
        k = w1_next[0]
        if k >= 18: return
        w1_next[0] += 1
        G, c = divmod(k, 3)
        I('s_mov_b32 m0, s%d' % sW1M)
        I('s_add_u32 s%d, s%d, 1024' % (sW1M, sW1M))
        I('buffer_load_dwordx4 v%d, %s, s%d offen lds' % (vW1o[c], srd(SW1), sW1O), 'w1')
        if c == 2 and G < 5: I('s_add_u32 s%d, s%d, %d' % (sW1O, sW1O, 16 * 768))

def prologue():
    T = 216
    I('s_cmp_ge_u32 s2, 256')
    I('s_cbranch_scc1 L_end')
    I('s_load_dwordx16 s[4:19], s[0:1], 0')
    I('s_load_dwordx2 s[20:21], s[0:1], 64')
    if OPT['dbgt']:
        I('s_memtime s[80:81]'); I('s_memrealtime s[82:83]')
    if STAMPS:
        I('%s %s' % ('s_memtime' if STAMPS == 2 else 's_memrealtime', sp(98)))
        nst[0] += 1; stamp_names.append('start')
    I('v_and_b32 v1, 63, v0')
    I('v_lshrrev_b32 v%d, 6, v0' % T)
    I('s_and_b32 s%d, s2, 7' % sT0)
    I('s_lshr_b32 s%d, s2, 3' % sT1)
    I('v_readfirstlane_b32 s%d, v%d' % (sW, T))
    I('s_lshr_b32 s%d, s%d, 1' % (sT2, sT0)); I('s_lshl_b32 s%d, s%d, 2' % (sT2, sT2))
    I('s_lshr_b32 s%d, s%d, 3' % (sT3, sT1)); I('s_add_u32 s%d, s%d, s%d' % (sTY, sT2, sT3))
    I('s_and_b32 s%d, s%d, 1' % (sT2, sT0)); I('s_lshl_b32 s%d, s%d, 3' % (sT2, sT2))
    I('s_and_b32 s%d, s%d, 7' % (sT3, sT1)); I('s_add_u32 s%d, s%d, s%d' % (sTX, sT2, sT3))
    I('s_mul_i32 s%d, s%d, 14' % (sGY0, sTY)); I('s_sub_u32 s%d, s%d, 2' % (sGY0, sGY0))
    I('s_mul_i32 s%d, s%d, 14' % (sGX0, sTX)); I('s_sub_u32 s%d, s%d, 2' % (sGX0, sGX0))
    I('v_mul_u32_u24 v%d, 57, v1' % T); I('v_lshrrev_b32 v%d, 10, v%d' % (T, T))
    I('v_mul_u32_u24 v%d, 18, v%d' % (T + 1, T)); I('v_sub_u32 v%d, v1, v%d' % (T + 1, T + 1))
    I('v_add_u32 v%d, s%d, v%d' % (T + 1, sGX0, T + 1))
    I('s_mul_i32 s%d, s%d, 48' % (sT0, sW))
    I('v_mul_i32_i24 v%d, 192, v%d' % (T + 2, T + 1))
    I('v_lshl_add_u32 v%d, v%d, 4, v%d' % (T + 2, T, T + 2))
    I('v_add_u32 v%d, s%d, v%d' % (T + 2, sT0, T + 2))
    I('v_mov_b32 v%d, 0x80000000' % (T + 3))
    I('v_cmp_gt_u32 vcc, 224, v%d' % (T + 1))
    I('v_cndmask_b32 v%d, v%d, v%d, vcc' % (vXo, T + 3, T + 2))
    I('v_mul_u32_u24 v%d, 171, v1' % T); I('v_lshrrev_b32 v%d, 9, v%d' % (T, T))
    I('v_mul_u32_u24 v%d, 3, v%d' % (T + 1, T)); I('v_sub_u32 v%d, v1, v%d' % (T + 1, T + 1))
    I('v_mul_u32_u24 v%d, 192, v%d' % (T, T)); I('v_lshl_add_u32 v%d, v%d, 4, v%d' % (T, T + 1, T))
    I('v_add_u32 v%d, s%d, v%d' % (T + 4, sT0, T))
    I('v_add_u32 v%d, 64, v1' % (T + 1))
    I('v_mul_u32_u24 v%d, 171, v%d' % (T, T + 1)); I('v_lshrrev_b32 v%d, 9, v%d' % (T, T))
    I('v_mul_u32_u24 v%d, 3, v%d' % (T + 2, T)); I('v_sub_u32 v%d, v%d, v%d' % (T + 2, T + 1, T + 2))
    I('v_mul_u32_u24 v%d, 192, v%d' % (T, T)); I('v_lshl_add_u32 v%d, v%d, 4, v%d' % (T, T + 2, T))
    I('v_add_u32 v%d, s%d, v%d' % (T, sT0, T))
    I('v_cmp_gt_u32 vcc, 75, v%d' % (T + 1))
    I('v_cndmask_b32 v%d, v%d, v%d, vcc' % (T + 5, T + 3, T))
    I('s_mul_i32 s%d, s%d, 864' % (sXM, sW))
    I('s_mul_i32 s%d, s%d, 43008' % (sXO, sGY0))
    I('s_mul_i32 s%d, s%d, %d' % (sT1, sW, DWS_W)); I('s_add_u32 s%d, s%d, %d' % (sT1, sT1, DWS))
    I('s_add_u32 s%d, s%d, 1024' % (sT2, sT1))
    I('s_waitcnt lgkmcnt(0)')
    if STAMPS: I('s_mov_b32 s%d, s98' % sStamp)
    mk(SDW, 6, 4800); mk(SX, 4, 9633792)
    I('s_mov_b32 m0, s%d' % sT1)
    I('buffer_load_dwordx4 v%d, %s, 0 offen lds' % (T + 4, srd(SDW)), 'dw')
    I('s_mov_b32 m0, s%d' % sT2)
    I('s_mov_b32 exec_lo, 0xffff'); I('s_mov_b32 exec_hi, 0')
    I('buffer_load_dwordx4 v%d, %s, 0 offen lds' % (T + 5, srd(SDW)), 'dw')
    I('s_mov_b32 exec_lo, -1'); exec54()
    x_dma(OPT['ahead'])
    execall()
    stamp('x issued')
    mk(SW1, 8, 73728); mk(SW2, 10, 73728)
    mk(SWS, 20, 0x200000 if (DEBUG or STAMPS) == 0 else 0x8000000)
    if OPT['pref']:
        I('s_lshr_b32 s%d, s2, 3' % sT0); I('s_lshl_b32 s%d, s%d, 2' % (sT0, sT0)); I('s_add_u32 s%d, s%d, s%d' % (sT0, sT0, sW))
        I('s_mul_i32 s%d, s%d, 640' % (sT1, sT0))
        I('v_lshlrev_b32 v%d, 7, v1' % vPf); I('v_add_u32 v%d, s%d, v%d' % (vPf, sT1, vPf))
        I('s_mov_b64 exec, 31')
        I('buffer_load_dword v%d, v%d, %s, 0 offen' % (vPfD, vPf, srd(SW1)), 'pf')
        I('buffer_load_dword v%d, v%d, %s, 0 offen' % (vPfD, vPf, srd(SW2)), 'pf')
        I('s_getpc_b64 %s' % sp(sT4))
        A.label('L_pc')
        I('s_lshl_b32 s%d, s%d, 8' % (sT1, sT0))
        I('v_lshlrev_b32 v%d, 7, v1' % vPf); I('v_add_u32 v%d, s%d, v%d' % (vPf, sT1, vPf))
        I('v_min_u32 v%d, CODE_LAST, v%d' % (vPf, vPf))
        I('s_mov_b64 exec, 3')
        I('global_load_dword v%d, v%d, %s' % (vPfD, vPf, sp(sT4)), 'pf')
        execall()
    mk(SDBG, 18, 256); mk(SOUT, 16, 9633792); mk(SG, 12, 768); mk(SB, 14, 768)
    for c in range(3):
        I('v_add_u32 v%d, %d, v1' % (T, 64 * c))
        I('v_mul_u32_u24 v%d, 171, v%d' % (T + 1, T)); I('v_lshrrev_b32 v%d, 11, v%d' % (T + 1, T + 1))
        I('v_mul_u32_u24 v%d, 12, v%d' % (T + 2, T + 1)); I('v_sub_u32 v%d, v%d, v%d' % (T + 2, T, T + 2))
        I('v_mul_u32_u24 v%d, 768, v%d' % (T + 1, T + 1))
        I('v_lshl_add_u32 v%d, v%d, 4, v%d' % (vW1o[c], T + 2, T + 1))
    for p in range(192): assert (p * 171) >> 11 == p // 12
    I('s_mul_i32 s%d, s%d, 192' % (sW1O, sW))
    I('s_mul_i32 s%d, s%d, %d' % (sW1M, sW, W1S_W)); I('s_add_u32 s%d, s%d, %d' % (sW1M, sW1M, W1S))

def conv_setup():
    T = 216
    n_, g_, g1, sg = T, T + 1, T + 2, T + 3
    t0, t1, t2 = T + 4, T + 5, T + 6
    I('v_and_b32 v%d, 15, v1' % n_); I('v_lshrrev_b32 v%d, 4, v1' % g_)
    I('v_and_b32 v%d, 1, v%d' % (g1, g_)); I('v_lshrrev_b32 v%d, 1, v%d' % (sg, g_))
    I('s_mul_i32 s%d, s%d, 864' % (sT0, sW))
    I('v_add_u32 v%d, v%d, v%d' % (t0, n_, g_)); I('v_lshlrev_b32 v%d, 4, v%d' % (t0, t0))
    I('v_add_u32 v%d, s%d, v%d' % (vH, sT0, t0))
    I('v_add_u32 v%d, 4, v%d' % (t1, n_)); I('v_lshlrev_b32 v%d, 4, v%d' % (t1, t1)); I('v_add_u32 v%d, s%d, v%d' % (t1, sT0, t1))
    I('v_mul_u32_u24 v%d, %d, v%d' % (t0, XROW, g_)); I('v_add_u32 v%d, v%d, v%d' % (vV1, t0, t1))
    I('v_add_u32 v%d, 4, v%d' % (t0, g1)); I('v_mul_u32_u24 v%d, %d, v%d' % (t0, XROW, t0)); I('v_add_u32 v%d, v%d, v%d' % (vV2, t0, t1))
    I('v_lshl_add_u32 v%d, v%d, 4, v%d' % (t0, sg, n_)); I('v_lshlrev_b32 v%d, 5, v%d' % (t0, t0))
    I('v_add_u32 v%d, %d, v%d' % (vStR, STATS, t0))
    I('s_lshl_b32 s%d, s%d, 3' % (sT1, sW))
    I('v_lshl_add_u32 v%d, v%d, 2, v%d' % (t0, g1, vStR)); I('v_add_u32 v%d, s%d, v%d' % (vStW, sT1, t0))
    I('v_mul_u32_u24 v%d, 14, v%d' % (t0, sg)); I('v_add_u32 v%d, v%d, v%d' % (t0, t0, n_))
    I('v_mul_u32_u24 v%d, %d, v%d' % (t0, YP, t0)); I('v_lshl_add_u32 v%d, v%d, 3, v%d' % (t0, g1, t0))
    I('s_mul_i32 s%d, s%d, 48' % (sT1, sW)); I('v_add_u32 v%d, s%d, v%d' % (vY, sT1, t0))
    I('s_mov_b32 s%d, 0x0f0f0f0f' % sMc4); I('s_mov_b32 s%d, 0x0f0f0f0f' % (sMc4 + 1))
    I('s_mov_b32 s%d, 0x3fff3fff' % sM14); I('s_mov_b32 s%d, 0x3fff3fff' % (sM14 + 1))
    sm, cb, zs, gh = T + 7, T + 8, T + 9, T + 10
    I('v_lshrrev_b32 v%d, 3, v%d' % (sm, n_)); I('v_and_b32 v%d, 7, v%d' % (cb, n_))
    I('s_mul_i32 s%d, s%d, %d' % (sT1, sW, DWS_W)); I('s_add_u32 s%d, s%d, %d' % (sT1, sT1, DWS))
    I('v_lshl_add_u32 v%d, v%d, 1, s%d' % (cb, cb, sT1))
    I('v_add_u32 v%d, %d, v%d' % (zs, 75 * 16, cb))
    I('v_and_b32 v%d, 3, v%d' % (t0, n_)); I('v_mul_u32_u24 v%d, 0x5555, v%d' % (vIDX, t0))
    for f in range(4):
        for hlf in range(2):
            dst = 22 + f * 2 + hlf
            if f < 3:
                I('v_sub_u32 v%d, v%d, v%d' % (t0, sg, sm))
                if f: I('v_add_u32 v%d, %d, v%d' % (t0, 2 * f, t0))
                I('v_mul_i32_i24 v%d, 5, v%d' % (t1, t0))
                I('v_lshl_add_u32 v%d, v%d, 1, v%d' % (t1, g1, t1))
                if hlf: I('v_add_u32 v%d, 1, v%d' % (t1, t1))
            else:
                I('v_lshlrev_b32 v%d, 1, v%d' % (t0, g_)); I('v_sub_u32 v%d, v%d, v%d' % (t0, t0, sm))
                if hlf: I('v_add_u32 v%d, 1, v%d' % (t0, t0))
                I('v_mul_i32_i24 v%d, 5, v%d' % (t1, t0)); I('v_add_u32 v%d, 4, v%d' % (t1, t1))
            I('v_mul_i32_i24 v%d, 48, v%d' % (t1, t1)); I('v_add_u32 v%d, v%d, v%d' % (t1, cb, t1))
            I('v_cmp_gt_u32 vcc, 5, v%d' % t0)
            I('v_cndmask_b32 v%d, v%d, v%d, vcc' % (dst, zs, t1))

def later_setup():
    T = 228
    m_, hf, t0, t1, t2 = T, T + 1, T + 2, T + 3, T + 4
    I('v_and_b32 v%d, 31, v1' % m_); I('v_lshrrev_b32 v%d, 5, v1' % hf)
    I('v_and_b32 v%d, 0x13, v%d' % (t0, m_))
    I('v_and_b32 v%d, 4, v%d' % (t1, m_)); I('v_lshl_or_b32 v%d, v%d, 1, v%d' % (t0, t1, t0))
    I('v_and_b32 v%d, 8, v%d' % (t1, m_)); I('v_lshrrev_b32 v%d, 1, v%d' % (t1, t1)); I('v_or_b32 v%d, v%d, v%d' % (t0, t0, t1))
    I('v_mul_u32_u24 v%d, %d, v%d' % (t0, YP, t0)); I('v_lshl_add_u32 v%d, v%d, 4, v%d' % (vYr, hf, t0))
    I('v_bfe_u32 v%d, v%d, 2, 1' % (t0, m_)); I('v_and_b32 v%d, 1, v%d' % (t1, m_))
    I('v_lshl_add_u32 v%d, v%d, 1, v%d' % (t0, t0, t1)); I('v_add_u32 v%d, 192, v%d' % (t0, t0))
    I('v_mul_u32_u24 v%d, %d, v%d' % (t0, YP, t0)); I('v_lshl_add_u32 v%d, v%d, 4, v%d' % (vYrem, hf, t0))
    I('s_mul_i32 s%d, s%d, %d' % (sT0, sW, 96 * 128)); I('s_add_u32 s%d, s%d, %d' % (sT0, sT0, RING))
    I('v_lshlrev_b32 v%d, 7, v%d' % (t0, m_)); I('v_add_u32 v%d, s%d, v%d' % (t0, sT0, t0))
    I('v_and_b32 v%d, 7, v%d' % (t1, m_)); I('v_xor_b32 v%d, v%d, v%d' % (t1, t1, hf))
    for jp in range(2):
        for s in range(2):
            I('v_xor_b32 v%d, %d, v%d' % (t2, 4 * jp + 2 * s, t1))
            I('v_lshl_add_u32 v%d, v%d, 4, v%d' % (vHW[jp][s], t2, t0))
    I('s_mul_i32 s%d, s%d, %d' % (sT0, sW, 96 * 8))
    I('v_lshlrev_b32 v%d, 3, v%d' % (t0, m_)); I('v_lshl_add_u32 v%d, v%d, 2, v%d' % (t0, hf, t0))
    I('v_add_u32 v%d, s%d, v%d' % (vRemW, sT0, t0))
    g_, rr, cc = T, T + 1, T + 5
    I('v_lshrrev_b32 v%d, 4, v1' % g_); I('v_bfe_u32 v%d, v1, 2, 2' % rr); I('v_and_b32 v%d, 3, v1' % cc)
    I('v_lshrrev_b32 v%d, 1, v%d' % (t0, g_)); I('v_lshlrev_b32 v%d, 4, v%d' % (t0, t0))
    I('v_and_b32 v%d, 1, v%d' % (t1, g_)); I('v_lshl_add_u32 v%d, v%d, 2, v%d' % (t1, t1, rr))
    I('v_add_u32 v%d, v%d, v%d' % (t0, t0, t1))
    I('v_lshlrev_b32 v%d, 3, v%d' % (vRemR, t0))
    I('s_lshl_b32 s%d, s%d, 1' % (sT0, sW))
    I('v_lshrrev_b32 v%d, 1, v%d' % (t2, cc)); I('v_add_u32 v%d, s%d, v%d' % (t2, sT0, t2)); I('v_xor_b32 v%d, v%d, v%d' % (t2, t2, t1))
    I('v_lshlrev_b32 v%d, 7, v%d' % (t0, t0)); I('v_lshl_add_u32 v%d, v%d, 4, v%d' % (t0, t2, t0))
    I('v_and_b32 v%d, 1, v%d' % (t2, cc)); I('v_lshl_add_u32 v%d, v%d, 3, v%d' % (t0, t2, t0))
    I('v_add_u32 v%d, %d, v%d' % (vHR[0], RING, t0)); I('v_add_u32 v%d, %d, v%d' % (vHR[1], RING + SETSZ, t0))
    I('s_mov_b32 s%d, %s' % (sK, hx(f32(KK)))); I('s_mov_b32 s%d, %s' % (sK + 1, hx(f32(KK))))
    n_ = T + 1
    I('v_and_b32 v%d, 15, v1' % n_)
    I('s_mul_i32 s%d, s%d, 14' % (sT2, sTY)); I('s_mul_i32 s%d, s%d, 14' % (sT3, sTX))
    I('s_mul_i32 s%d, s%d, 224' % (sT2, sT2)); I('s_add_u32 s%d, s%d, s%d' % (sT2, sT2, sT3))
    I('s_mul_i32 s%d, s%d, 192' % (sT2, sT2))
    I('s_lshl_b32 s%d, s%d, 4' % (sT3, sW))
    for i in range(4):
        if i < 3:
            I('v_add_u32 v%d, s%d, v%d' % (t0, sT3, n_))
            if i: I('v_add_u32 v%d, %d, v%d' % (t0, 64 * i, t0))
        else:
            I('v_and_b32 v%d, 3, v%d' % (t0, n_)); I('v_add_u32 v%d, 192, v%d' % (t0, t0))
        I('v_mul_u32_u24 v%d, 4682, v%d' % (t1, t0)); I('v_lshrrev_b32 v%d, 16, v%d' % (t1, t1))
        I('v_mul_u32_u24 v%d, 14, v%d' % (t2, t1)); I('v_sub_u32 v%d, v%d, v%d' % (t2, t0, t2))
        I('v_mul_u32_u24 v%d, 224, v%d' % (t1, t1)); I('v_add_u32 v%d, v%d, v%d' % (t1, t1, t2))
        I('v_mul_u32_u24 v%d, 192, v%d' % (t1, t1)); I('v_lshl_add_u32 v%d, v%d, 4, v%d' % (t1, g_, t1))
        I('v_add_u32 v%d, s%d, v%d' % (vOut[i], sT2, t1))
    for p in range(208): assert (p * 4682) >> 16 == p // 14
    I('s_min_u32 s%d, s%d, 2' % (sRT, sW))
    I('s_lshl_b32 s%d, s%d, 6' % (sT5, sRT))
    I('v_add_u32 v%d, s%d, v%d' % (vOut[3], sT5, vOut[3]))
    I('v_and_b32 v%d, 3, v1' % vChkA); I('v_lshlrev_b32 v%d, 6, v%d' % (vChkA, vChkA))

def phaseC_addr():
    T = 232
    g_, ro, ch, t0 = T, T + 1, T + 2, T + 3
    I('v_lshlrev_b32 v%d, 4, v1' % vAr)
    I('v_lshrrev_b32 v%d, 4, v1' % g_)
    I('v_lshrrev_b32 v%d, 1, v%d' % (ro, g_)); I('v_lshlrev_b32 v%d, 4, v%d' % (ro, ro))
    I('v_and_b32 v%d, 1, v%d' % (t0, g_)); I('v_lshl_add_u32 v%d, v%d, 2, v%d' % (ro, t0, ro))
    I('s_mul_i32 s%d, s%d, 96' % (sT3, sW)); I('v_add_u32 v%d, s%d, v%d' % (ch, sT3, ro))
    I('v_lshlrev_b32 v%d, 1, v%d' % (vBa, ch))
    I('v_lshlrev_b32 v%d, 2, v%d' % (vFac, ch)); I('v_add_u32 v%d, %d, v%d' % (vFac, SFAC, vFac))
    I('v_bfe_u32 v%d, v1, 2, 2' % t0); I('v_add_u32 v%d, v%d, v%d' % (ro, ro, t0)); I('v_mul_u32_u24 v%d, 192, v%d' % (ro, ro))
    I('v_and_b32 v%d, 3, v1' % t0); I('v_lshl_add_u32 v%d, v%d, 4, v%d' % (ro, t0, ro))
    I('s_mul_i32 s%d, s%d, %d' % (sT0, sW, W2RAW_W)); I('s_add_u32 s%d, s%d, %d' % (sT0, sT0, W2RAW))
    I('v_add_u32 v%d, s%d, v%d' % (vW2r, sT0, ro))
    I('s_and_b32 s%d, s2, %d' % (sT0, NREP - 1)); I('s_mul_i32 s%d, s%d, 1536' % (sT0, sT0)); I('s_add_u32 s%d, s%d, %d' % (sPoll, sT0, WS_TOT))
    I('v_min_u32 v%d, 31, v1' % vPoll2); I('v_lshlrev_b32 v%d, 4, v%d' % (vPoll2, vPoll2)); I('v_add_u32 v%d, s%d, v%d' % (vPoll2, sPoll, vPoll2))
    I('v_lshlrev_b32 v%d, 5, v%d' % (vBp, g_))
def phaseC_addr2(): pass

def clears():
    T = 240
    I('v_mov_b32 v%d, -1' % (T + 8)); I('v_mov_b32 v%d, -1' % (T + 9)); I('v_mov_b32 v%d, -1' % (T + 10)); I('v_mov_b32 v%d, -1' % (T + 11))
    I('s_mul_i32 s%d, s2, 1536' % sT1); I('s_mul_i32 s%d, s%d, 384' % (sT2, sW)); I('s_add_u32 s%d, s%d, s%d' % (sT1, sT1, sT2))
    I('v_lshlrev_b32 v%d, 4, v1' % (T + 12)); I('v_add_u32 v%d, s%d, v%d' % (T + 12, sT1, T + 12))
    I('s_mov_b32 exec_lo, 0x00ffffff'); I('s_mov_b32 exec_hi, 0')
    I('buffer_store_dwordx4 %s, v%d, %s, 0 offen sc1' % (v(T + 8, 4), T + 12, srd(SWS)), 'clr')
    I('s_cmp_ge_u32 s2, %d' % NREP)
    I('s_cselect_b32 s%d, 2.0, %d' % (sT1, WS_TOT))
    I('buffer_store_dwordx4 %s, v%d, %s, s%d offen sc1' % (v(T + 8, 4), T + 12, srd(SWS), sT1), 'clr')
    execall()

def conv():
    A.wait_vm('dw')
    if OPT['st_pro']: stamp('dw landed')
    for o in range(3):
        for f in range(4):
            for hlf in range(2):
                I('ds_read_u16 v%d, v%d offset:%d' % (BH + (o * 4 + f) * 2 + hlf, 22 + f * 2 + hlf, 16 * o), 'dwr')
    A.wait_lg('dwr')
    for o in range(3):
        for f in range(4):
            for hlf in range(2):
                src = BH + (o * 4 + f) * 2 + hlf
                I('v_cndmask_b32 v%d, 0, v%d, %s' % (ac(o, f) + 2 * hlf, src, sp(sMc4)))
                I('v_cndmask_b32 v%d, v%d, 0, %s' % (ac(o, f) + 2 * hlf + 1, src, sp(sMc4)))
    stamp('Aconv')
    I('s_mov_b32 s%d, %s' % (sT0, hx(f32(1.0 / 96.0))))
    I('s_mov_b32 s%d, %s' % (sT4, hx(f32(1e-5))))
    I('s_mov_b32 s%d, %s' % (sT5, hx(f32(AS))))
    sInv, sEps, sAs = 96, 97, 68
    I('s_mov_b32 s%d, s%d' % (sInv, sT0)); I('s_mov_b32 s%d, s%d' % (sEps, sT4)); I('s_mov_b32 s%d, s%d' % (sAs, sT5))
    def stats(t):
        s0, q0 = TS, TS + 2
        I('v_pk_add_f32 %s, %s, %s' % (v(s0, 2), v(dc(t, 0), 2), v(dc(t, 0) + 2, 2)))
        I('v_pk_mul_f32 %s, %s, %s' % (v(q0, 2), v(dc(t, 0), 2), v(dc(t, 0), 2)))
        rest = [dc(t, 0) + 2, dc(t, 1), dc(t, 1) + 2, dc(t, 2), dc(t, 2) + 2]
        for k, r in enumerate(rest):
            if k > 0: I('v_pk_add_f32 %s, %s, %s' % (v(s0, 2), v(s0, 2), v(r, 2)))
            I('v_pk_fma_f32 %s, %s, %s, %s' % (v(q0, 2), v(r, 2), v(r, 2), v(q0, 2)))
        I('v_add_f32 v%d, v%d, v%d' % (s0, s0, s0 + 1))
        I('v_add_f32 v%d, v%d, v%d' % (q0, q0, q0 + 1))
        I('v_permlane16_swap_b32 v%d, v%d' % (s0, q0))
        I('v_add_f32 v%d, v%d, v%d' % (s0, s0, q0))
    def stats_w(t): I('ds_write_b32 v%d, v%d offset:%d' % (vStW, TS, 1024 * t), 'stw')
    def fin_r(t, r):
        I('ds_read_b128 %s, v%d offset:%d' % (v(r, 4), vStR, 1024 * t), 'st%d' % t)
        I('ds_read_b128 %s, v%d offset:%d' % (v(r + 4, 4), vStR, 1024 * t + 16), 'st%d' % t)
    def fin(t, r):
        A.wait_lg('st%d' % t)
        I('v_pk_add_f32 %s, %s, %s' % (v(r, 2), v(r, 2), v(r + 2, 2)))
        I('v_pk_add_f32 %s, %s, %s' % (v(r + 4, 2), v(r + 4, 2), v(r + 6, 2)))
        I('v_pk_add_f32 %s, %s, %s' % (v(r, 2), v(r, 2), v(r + 4, 2)))
        I('v_mul_f32 v%d, s%d, v%d' % (r, sInv, r))
        I('v_mul_f32 v%d, s%d, v%d' % (r + 1, sInv, r + 1))
        I('v_fma_f32 v%d, -v%d, v%d, v%d' % (r + 1, r, r, r + 1))
        I('v_max_f32 v%d, 0, v%d' % (r + 1, r + 1))
        I('v_add_f32 v%d, s%d, v%d' % (r + 1, sEps, r + 1))
        I('v_rsq_f32 v%d, v%d' % (r + 1, r + 1))
        I('v_mul_f32 v%d, s%d, v%d' % (r + 2, sAs, r + 1))
        I('v_mul_f32 v%d, -v%d, v%d' % (r + 3, r, r + 2))
        for o in range(3):
            d = dc(t, o)
            for hh in (0, 2):
                I('v_pk_fma_f32 %s, %s, %s, %s op_sel:[0,0,1] op_sel_hi:[1,0,1]' % (v(d + hh, 2), v(d + hh, 2), v(r + 2, 2), v(r + 2, 2)))
            I('v_cvt_pk_bf16_f32 v%d, v%d, v%d' % (d, d, d + 1))
            I('v_cvt_pk_bf16_f32 v%d, v%d, v%d' % (d + 1, d + 2, d + 3))
    def fin_w(t):
        I('s_mov_b64 exec, %s' % sp(sM14))
        for o in range(3):
            I('ds_write_b64 v%d, %s offset:%d' % (vY, v(dc(t, o), 2), YB + 28 * YP * t + 16 * o), 'yw')
        execall()
    def fin_all(ts, rbase):
        for k, t in enumerate(ts): fin(t, rbase + 8 * k)
        for k, t in enumerate(ts): fin_w(t)
    for s in range(9):
        rho = 2 * s; tn = s
        A.wait_vm('x%d' % (rho + 1))
        if (s in (0, 4, 8) and not OPT['st_conv']) or (OPT['st_conv'] and s >= 1): stamp('rows<=%d' % (rho + 1))
        t1 = s - 3
        fins = {7: (0, 1), 8: (2, 3)}.get(s, ())
        for k, t in enumerate(fins): fin_r(t, FN + 8 * k)
        for o in range(3):
            off = rho * XROW + 288 * o
            I('ds_read_b128 %s, v%d offset:%d' % (v(BH + 8 * o, 4), vH, off), 'h%d' % o)
            I('ds_read_b128 %s, v%d offset:%d' % (v(BH + 8 * o + 4, 4), vH, off + XROW), 'h%d' % o)
        if rho >= 4:
            for o in range(3):
                off = (rho - 4) * XROW + 288 * o
                I('ds_read_b128 %s, v%d offset:%d' % (v(BV + 8 * o, 4), vV1, off), 'v%d' % o)
                I('ds_read_b128 %s, v%d offset:%d' % (v(BV + 8 * o + 4, 4), vV2, off), 'v%d' % o)
        def dma_x():
            if xrow_next[0] <= 17:
                exec54(); x_dma(1); execall()
        dma_x()
        if tn <= 6:
            for o in range(3):
                I('v_mov_b64 %s, 0' % v(dc(tn, o), 2)); I('v_mov_b64 %s, 0' % v(dc(tn, o) + 2, 2))
        if s >= 2: w1_dma(1)
        if t1 >= 0: stats(t1)
        dma_x()
        for k, t in enumerate(fins): fin(t, FN + 8 * k)
        if s >= 2: w1_dma(1)
        if t1 >= 0: stats_w(t1)
        for k, t in enumerate(fins): fin_w(t)
        if s == 1: later_setup()
        if s == 2: phaseC_addr()
        if s == 5: clears()
        for o in range(3):
            A.wait_lg('h%d' % o)
            for f in range(3):
                t = tn - f
                if 0 <= t <= 6:
                    I('v_smfmac_f32_16x16x64_bf16 %s, %s, %s, v%d' % (v(dc(t, o), 4), v(ac(o, f), 4), v(BH + 8 * o, 8), vIDX))
            if s >= 2 and o == 1: w1_dma(1)
        if rho >= 4:
            for o in range(3):
                A.wait_lg('v%d' % o)
                I('v_smfmac_f32_16x16x64_bf16 %s, %s, %s, v%d' % (v(dc(tn - 2, o), 4), v(ac(o, 3), 4), v(BV + 8 * o, 8), vIDX))
        if s == 6:
            A.wait_lg(); barrier()
    w1_dma(18)
    stats(6); stats_w(6)
    T = 216 + 4
    I('v_lshrrev_b32 v%d, 4, v1' % T); I('v_bfe_u32 v%d, v1, 2, 2' % (T + 1)); I('v_and_b32 v%d, 3, v1' % (T + 2))
    I('v_lshrrev_b32 v%d, 1, v%d' % (T + 3, T)); I('v_lshl_add_u32 v%d, v%d, 3, v%d' % (T + 3, T + 3, T + 1))
    I('v_mul_u32_u24 v%d, 192, v%d' % (T + 3, T + 3))
    I('v_and_b32 v%d, 1, v%d' % (T + 4, T)); I('v_lshl_add_u32 v%d, v%d, 5, v%d' % (T + 3, T + 4, T + 3))
    I('v_lshl_add_u32 v%d, v%d, 3, v%d' % (T + 3, T + 2, T + 3))
    I('s_mul_i32 s%d, s%d, %d' % (sT1, sW, W1S_W)); I('s_add_u32 s%d, s%d, %d' % (sT1, sT1, W1S))
    I('v_add_u32 v%d, s%d, v%d' % (vW1, sT1, T + 3))
    A.wait_lg(); barrier()
    stamp('conv done')
    FT = 104
    for k, t in enumerate((4, 5, 6)): fin_r(t, FT + 8 * k)
    A.wait_vm()
    for t in range(3):
        for kc in range(6):
            off = kc * 3072 + t * 64
            I('ds_read_b64_tr_b16 %s, v%d offset:%d' % (v(w1f(t, kc), 2), vW1, off), 'w1r')
            I('ds_read_b64_tr_b16 %s, v%d offset:%d' % (v(w1f(t, kc) + 2, 2), vW1, off + 768), 'w1r')
    for k, t in enumerate((4, 5, 6)): fin(t, FT + 8 * k)
    for k, t in enumerate((4, 5, 6)): fin_w(t)
    for t in range(3):
        I('v_mov_b64 %s, 0' % v(SQ + 4 * t, 2)); I('v_mov_b64 %s, 0' % v(SQ + 4 * t + 2, 2))
    phaseC_addr2()
    A.wait_lg(); barrier()

def arrive():
    I('s_cmp_lg_u32 s%d, 0' % sW)
    I('s_cbranch_scc1 L_noarrive')
    I('s_and_b32 s%d, s2, 3' % sT0); I('s_lshl_b32 s%d, s%d, 6' % (sT0, sT0))
    I('v_mov_b32 v%d, s%d' % (TT, sT0)); I('v_mov_b32 v%d, 1' % (TT + 1))
    I('s_mov_b64 exec, 1')
    A.raw('buffer_atomic_add v%d, v%d, %s, 0 offen' % (TT + 1, TT, srd(SDBG)))
    execall()
    A.label('L_noarrive')

W2F = 32
def w2f(T2, cl, b): return W2F + ((T2 * 3 + cl) * 2 + b) * 8
CA = 176
def ca(i, T2): return CA + (i * 3 + T2) * 8
CR = CA + 72
XR = 216
def xr_(q): return XR + 4 * q

def yreads(j, base):
    for kc in range(6):
        if j < 6: I('ds_read_b128 %s, v%d offset:%d' % (a_(base + 4 * kc, 4), vYr, YB + j * 32 * YP + 32 * kc), 'y%d' % j)
        else:     I('ds_read_b128 %s, v%d offset:%d' % (a_(base + 4 * kc, 4), vYrem, YB + 32 * kc), 'y%d' % j)
def mfma1(acc, ybase, t, kc):
    c = '0' if kc == 0 else v(acc, 16)
    return 'v_mfma_f32_32x32x16_bf16 %s, %s, %s, %s' % (v(acc, 16), a_(ybase + 4 * kc, 4), v(w1f(t, kc), 4), c)
def mfmar(t, kc):
    c = '0' if kc == 0 else a_(ACCR, 16)
    return 'v_mfma_f32_32x32x16_bf16 %s, %s, %s, %s' % (a_(ACCR, 16), a_(YR + 4 * kc, 4), v(w1f(t, kc), 4), c)

def gelu(srcs, sq, mf, extra, tail):
    npair = len(srcs); n = 2 * npair
    for i, s in enumerate(srcs): I('v_pk_fma_f32 %s, %s, %s, %s' % (v(TT + 2 * i, 2), v(s, 2), v(s, 2), sp(sK)))
    for i, s in enumerate(srcs): I('v_pk_mul_f32 %s, %s, %s' % (v(TT + 2 * i, 2), v(s, 2), v(TT + 2 * i, 2)))
    m1, m2 = list(mf[:len(mf) // 2]), list(mf[len(mf) // 2:])
    def trans(op, ms):
        for i in range(n):
            if ms and i % 5 == 0: I(ms.pop(0))
            I('%s v%d, v%d' % (op, TT + i, TT + i))
    trans('v_exp_f32', m1)
    for i in range(npair): I('v_pk_add_f32 %s, %s, 1.0 op_sel_hi:[1,0]' % (v(TT + 2 * i, 2), v(TT + 2 * i, 2)))
    trans('v_rcp_f32', m2)
    assert not m1 and not m2
    for i, s in enumerate(srcs): I('v_pk_mul_f32 %s, %s, %s' % (v(TT + 2 * i, 2), v(s, 2), v(TT + 2 * i, 2)))
    for i in range(npair): I('v_pk_fma_f32 %s, %s, %s, %s' % (v(sq[i], 2), v(TT + 2 * i, 2), v(TT + 2 * i, 2), v(sq[i], 2)))
    extra = list(extra)
    for i in range(npair):
        if extra and i % 4 == 0: I(extra.pop(0))
        I('v_cvt_pk_bf16_f32 v%d, v%d, v%d' % (PP + i, TT + 2 * i, TT + 2 * i + 1))
    for m in extra: I(m)
    tail()

def hreads(setidx, sub, Ts):
    for T in Ts:
        for e2 in range(2):
            I('ds_read_b64_tr_b16 %s, v%d offset:%d' % (a_(HM + sub * 48 + T * 4 + 2 * e2, 2), vHR[setidx], T * 4096 + e2 * 1024), 'hr')

def phaseB():
    yreads(0, YA[0])
    A.wait_lg('y0')
    for kc in range(6): I(mfma1(ACC[0], YA[0], 0, kc))
    units = [(j, t) for j in range(6) for t in range(3)]
    xr = [(i, T2) for i in range(3) for T2 in range(3)] + [(3, 0)]
    for u, (j, t) in enumerate(units):
        acc = ACC[u & 1]
        mf = []
        if u + 1 < len(units):
            jn, tn_ = units[u + 1]
            mf = [mfma1(ACC[(u + 1) & 1], YA[jn & 1], tn_, kc) for kc in range(6)]
        extra = []
        if u >= 12:
            rt = (u - 12) // 2; k0 = 3 * ((u - 12) & 1)
            extra = [mfmar(rt, k0 + k) for k in range(3)]
        i = j // 2; jp = j & 1
        def tail(u=u, j=j, t=t, i=i, jp=jp):
            st = i & 1
            if jp == 0 and t == 0 and i >= 1:
                A.wait_lg(); barrier()
            if t == 0 and j < 5: yreads(j + 1, YA[(j + 1) & 1])
            if u == 10: yreads(6, YR)
            if i >= 1:
                k = 3 * jp + t
                hreads((i - 1) & 1, i - 1, (2 * k, 2 * k + 1))
            I('ds_write_b128 v%d, %s offset:%d' % (vHW[jp][0], v(PP, 4), t * 4096 + st * SETSZ), 'hw')
            I('ds_write_b128 v%d, %s offset:%d' % (vHW[jp][1], v(PP + 4, 4), t * 4096 + st * SETSZ), 'hw')
            if 6 <= u < 16:
                ii, T2 = xr[u - 6]
                if ii < 3: I('buffer_load_dwordx4 %s, v%d, %s, 0 offen offset:%d' % (v(xr_(ii * 3 + T2), 4), vOut[ii], srd(SX), 64 * T2), 'xr')
                else: I('buffer_load_dwordx4 %s, v%d, %s, 0 offen' % (v(xr_(9), 4), vOut[3], srd(SX)), 'xr')
            if u == 16: I('buffer_load_dword v%d, v%d, %s, 0 offen sc1' % (vChk, vChkA, srd(SDBG)), 'chk')
            if t == 1 and j < 5: A.wait_lg('y%d' % (j + 1))
            if u == 11: A.wait_lg('y6')
        if u in (14, 16):
            rt = (u - 14) // 2
            pre = ['v_accvgpr_read_b32 v%d, a%d' % (RS + 2 * rt, ACCR), 'v_accvgpr_read_b32 v%d, a%d' % (RS + 2 * rt + 1, ACCR + 1)]
            for p in pre: I(p)
        def tail2(tail=tail, u=u):
            tail()
        gelu([acc + 2 * k for k in range(8)], [SQ + 4 * t + 2 * (k & 1) for k in range(8)], mf, extra, tail)
        if u in (5, 17) and not OPT['st_conv'] and not OPT['st_pro']: stamp('unit %d' % u)
    I('v_accvgpr_read_b32 v%d, a%d' % (RS + 4, ACCR)); I('v_accvgpr_read_b32 v%d, a%d' % (RS + 5, ACCR + 1))
    def rtail():
        for t in range(3): I('ds_write_b32 v%d, v%d offset:%d' % (vRemW, PP + t, REM + 256 * t), 'rw')
    gelu([RS, RS + 2, RS + 4], [SQ, SQ + 4, SQ + 8], [], [], rtail)

def publish():
    for t in range(3):
        s = SQ + 4 * t
        I('v_pk_add_f32 %s, %s, %s' % (v(s, 2), v(s, 2), v(s + 2, 2)))
        I('v_add_f32 v%d, v%d, v%d' % (s, s, s + 1))
    I('v_mov_b32 v%d, v%d' % (SQ + 9, SQ + 8))
    I('v_permlane32_swap_b32 v%d, v%d' % (SQ, SQ + 4))
    I('v_permlane32_swap_b32 v%d, v%d' % (SQ + 8, SQ + 9))
    I('v_add_f32 v%d, v%d, v%d' % (SQ, SQ, SQ + 4))
    I('v_add_f32 v%d, v%d, v%d' % (SQ + 8, SQ + 8, SQ + 9))
    I('v_and_b32 v%d, 0x7fffffff, v%d' % (TT, SQ))
    I('v_and_b32 v%d, 0x7fffffff, v%d' % (TT + 4, SQ + 8))
    I('s_mul_i32 s%d, s2, 1536' % sT0); I('s_mul_i32 s%d, s%d, 384' % (sT1, sW)); I('s_add_u32 s%d, s%d, s%d' % (sT0, sT0, sT1))
    I('v_lshlrev_b32 v%d, 2, v1' % (TT + 8)); I('v_add_u32 v%d, s%d, v%d' % (TT + 8, sT0, TT + 8))
    for b in (TT, TT + 4):
        for k in (1, 2, 3):
            I('v_mov_b32_dpp v%d, v%d quad_perm:[%d,%d,%d,%d] row_mask:0xf bank_mask:0xf' % (b + k, b, k, k, k, k))
    A.wait_vm('chk')
    I('v_cmp_gt_u32 vcc, 64, v%d' % vChk)
    I('s_cbranch_vccz L_chk_done')
    I('s_mov_b32 s%d, %d' % (sCnt, SPIN))
    A.label('L_chk')
    A.raw('buffer_load_dword v%d, v%d, %s, 0 offen sc1' % (vChk, vChkA, srd(SDBG)))
    A.raw('s_waitcnt vmcnt(0)')
    I('v_cmp_gt_u32 vcc, 64, v%d' % vChk)
    I('s_cbranch_vccz L_chk_done')
    I('s_sleep 1')
    I('s_sub_u32 s%d, s%d, 1' % (sCnt, sCnt)); I('s_cmp_lg_u32 s%d, 0' % sCnt)
    I('s_cbranch_scc1 L_chk')
    A.label('L_chk_done')
    I('s_mov_b32 exec_lo, 0x11111111'); I('s_mov_b32 exec_hi, 0x11111111')
    I('buffer_store_dwordx4 %s, v%d, %s, 0 offen sc1' % (v(TT, 4), TT + 8, srd(SWS)), 'pub')
    I('s_mov_b32 exec_hi, 0')
    I('buffer_store_dwordx4 %s, v%d, %s, 0 offen offset:256 sc1' % (v(TT + 4, 4), TT + 8, srd(SWS)), 'pub')
    execall()

def reducer():
    I('s_cmp_ge_u32 s2, %d' % NRED)
    I('s_cbranch_scc1 L_nored')
    B = 32; X = 56
    I('v_lshrrev_b32 v%d, 2, v1' % X); I('s_lshl_b32 s%d, s%d, 6' % (sT0, sW)); I('v_add_u32 v%d, s%d, v%d' % (X, sT0, X))
    I('v_mul_u32_u24 v%d, 1536, v%d' % (X, X))
    I('v_and_b32 v%d, 3, v1' % (X + 1)); I('v_lshlrev_b32 v%d, 4, v%d' % (X + 1, X + 1))
    I('s_lshl_b32 s%d, s2, 6' % sT1); I('v_add3_u32 v%d, v%d, v%d, s%d' % (X, X, X + 1, sT1))
    I('s_mov_b32 s%d, %d' % (sT2, 16 * 1536)); I('s_mov_b32 s%d, %d' % (sT3, 32 * 1536)); I('s_mov_b32 s%d, %d' % (sT4, 48 * 1536))
    I('s_mov_b32 s%d, %d' % (sCnt, SPIN))
    A.label('L_red')
    for k, so in enumerate(['0', 's%d' % sT2, 's%d' % sT3, 's%d' % sT4]):
        A.raw('buffer_load_dwordx4 %s, v%d, %s, %s offen sc1' % (v(B + 4 * k, 4), X, srd(SWS), so))
    A.raw('s_waitcnt vmcnt(0)')
    I('v_max3_u32 v%d, v%d, v%d, v%d' % (X + 2, B, B + 1, B + 2))
    for k in range(3, 15, 2): I('v_max3_u32 v%d, v%d, v%d, v%d' % (X + 2, X + 2, B + k, B + k + 1))
    I('v_max_u32 v%d, v%d, v%d' % (X + 2, X + 2, B + 15))
    I('v_cmp_eq_u32 vcc, -1, v%d' % (X + 2))
    I('s_cbranch_vccz L_red_got')
    I('s_sub_u32 s%d, s%d, 1' % (sCnt, sCnt)); I('s_cmp_lg_u32 s%d, 0' % sCnt)
    I('s_cbranch_scc1 L_red')
    A.label('L_red_got')
    for k in (0, 2):
        I('v_pk_add_f32 %s, %s, %s' % (v(B + k, 2), v(B + k, 2), v(B + 4 + k, 2)))
        I('v_pk_add_f32 %s, %s, %s' % (v(B + 8 + k, 2), v(B + 8 + k, 2), v(B + 12 + k, 2)))
    for k in (0, 2): I('v_pk_add_f32 %s, %s, %s' % (v(B + k, 2), v(B + k, 2), v(B + 8 + k, 2)))
    for ror in (4, 8):
        for k in range(4): I('v_add_f32_dpp v%d, v%d, v%d row_ror:%d row_mask:0xf bank_mask:0xf' % (B + k, B + k, B + k, ror))
    for sw in ('16', '32'):
        for k in range(4): I('v_mov_b32 v%d, v%d' % (B + 4 + k, B + k))
        for k in range(4): I('v_permlane%s_swap_b32 v%d, v%d' % (sw, B + 4 + k, B + k))
        for k in range(4): I('v_add_f32 v%d, v%d, v%d' % (B + k, B + k, B + 4 + k))
    I('v_and_b32 v%d, 3, v1' % (X + 1)); I('v_lshlrev_b32 v%d, 4, v%d' % (X + 1, X + 1))
    I('s_lshl_b32 s%d, s%d, 6' % (sT0, sW)); I('s_add_u32 s%d, s%d, %d' % (sT0, sT0, REDB))
    I('v_add_u32 v%d, s%d, v%d' % (X + 2, sT0, X + 1))
    I('s_mov_b64 exec, 15')
    I('ds_write_b128 v%d, %s' % (X + 2, v(B, 4)))
    execall()
    A.wait_lg(); barrier()
    I('s_cmp_lg_u32 s%d, 0' % sW)
    I('s_cbranch_scc1 L_nored')
    I('v_add_u32 v%d, %d, v%d' % (X + 2, REDB, X + 1))
    for k in range(4): I('ds_read_b128 %s, v%d offset:%d' % (v(B + 4 * k, 4), X + 2, 64 * k))
    A.wait_lg()
    for k in (0, 2):
        I('v_pk_add_f32 %s, %s, %s' % (v(B + k, 2), v(B + k, 2), v(B + 4 + k, 2)))
        I('v_pk_add_f32 %s, %s, %s' % (v(B + 8 + k, 2), v(B + 8 + k, 2), v(B + 12 + k, 2)))
    for k in (0, 2): I('v_pk_add_f32 %s, %s, %s' % (v(B + k, 2), v(B + k, 2), v(B + 8 + k, 2)))
    for k in range(4): I('v_and_b32 v%d, 0x7fffffff, v%d' % (B + k, B + k))
    I('v_lshrrev_b32 v%d, 2, v1' % X); I('v_mul_u32_u24 v%d, 1536, v%d' % (X, X))
    I('s_lshl_b32 s%d, s2, 6' % sT1); I('s_add_u32 s%d, s%d, %d' % (sT1, sT1, WS_TOT))
    I('v_add3_u32 v%d, v%d, v%d, s%d' % (X, X, X + 1, sT1))
    A.raw('buffer_store_dwordx4 %s, v%d, %s, 0 offen sc1' % (v(B, 4), X, srd(SWS)))
    A.label('L_nored')
    I('s_nop 1')

vArRem, vW2sW, vPoll, vSw, vAr2 = 2, 3, 4, 5, 6
vFac_c, vAr_c, vPoll2_c = 7, 8, 9
vTot = 16; vG = 24
def slot(k): return W2F + 8 * k
G2 = 200
def wait_issue():
    I('s_mul_i32 s%d, s%d, %d' % (sT0, sW, W2RAW_W)); I('s_add_u32 s%d, s%d, %d' % (sT1, sT0, W2RAW))
    for k in range(18):
        I('s_mov_b32 m0, s%d' % sT1)
        I('buffer_load_dwordx4 v%d, %s, s%d offen lds' % (vAr, srd(SW2), sT0), 'w2')
        if k < 17:
            I('s_add_u32 s%d, s%d, 1024' % (sT1, sT1)); I('s_add_u32 s%d, s%d, 1024' % (sT0, sT0))
    I('v_lshlrev_b32 v%d, 3, v1' % TT)
    I('buffer_load_dwordx2 %s, v%d, %s, 0 offen' % (v(G2 + 2, 2), TT, srd(SG)), 'g')
    I('buffer_load_dwordx2 %s, v%d, %s, 0 offen offset:512' % (v(G2 + 6, 2), TT, srd(SG)), 'g')
    for cl in range(3):
        I('buffer_load_dwordx2 %s, v%d, %s, 0 offen offset:%d' % (v(BFR[cl], 2), vBa, srd(SB), 64 * cl), 'b')
        I('buffer_load_dwordx2 %s, v%d, %s, 0 offen offset:%d' % (v(BFR[cl] + 2, 2), vBa, srd(SB), 64 * cl + 16), 'b')

BFR = [slot(9), slot(10), slot(11)]

def wait_compute():
    hreads(0, 2, range(12))
    for T in range(12):
        for e2 in range(2):
            I('ds_read_b64_tr_b16 %s, v%d offset:%d' % (a_(HR + T * 4 + 2 * e2, 2), vRemR, REM + T * 256 + e2 * 64), 'rr')
    A.wait_vm('g')
    I('s_mov_b32 s%d, %s' % (sT0, hx(f32(1.0 / AS))))
    for base in (G2, G2 + 4):
        for k in range(2):
            I('v_lshlrev_b32 v%d, 16, v%d' % (base + 2 * k, base + 2 + k))
            I('v_and_b32 v%d, 0xffff0000, v%d' % (base + 2 * k + 1, base + 2 + k))
        for k in range(4): I('v_mul_f32 v%d, s%d, v%d' % (base + k, sT0, base + k))
    A.wait_vm('w2')
    for T2 in range(3):
        for cl in range(3):
            for b in range(2):
                off = cl * 32 * 192 + 64 * T2 + 8 * b
                I('ds_read_b64_tr_b16 %s, v%d offset:%d' % (v(w2f(T2, cl, b) + 4, 2), vW2r, off), 'w2r')
                I('ds_read_b64_tr_b16 %s, v%d offset:%d' % (v(w2f(T2, cl, b) + 6, 2), vW2r, off + 8 * 192), 'w2r')
    I('s_mul_i32 s%d, s%d, %d' % (sT0, sW, 6 * 1024)); I('v_add_u32 v%d, s%d, v%d' % (vW2sW, sT0, vAr))
    I('s_mul_i32 s%d, s%d, %d' % (sT0, sRT, 24 * 1024)); I('v_add_u32 v%d, s%d, v%d' % (vArRem, sT0, vAr))
    I('v_add_u32 v%d, 49152, v%d' % (vAr2, vAr))
    I('v_add_u32 v%d, s%d, v%d' % (vPoll, sPoll, vAr))
    I('v_add_u32 v%d, %d, v%d' % (vSw, SFAC, vAr))
    SEL = 16
    I('v_and_b32 v7, 15, v1'); I('v_lshrrev_b32 v8, 4, v1'); I('v_lshrrev_b32 v9, 2, v7')
    I('v_and_b32 v10, 1, v7'); I('v_lshlrev_b32 v10, 4, v10'); I('v_mov_b32 v11, 0x3f80'); I('v_lshlrev_b32 v10, v10, v11')
    I('v_cmp_eq_u32 vcc, v8, v9'); I('v_cndmask_b32 v10, 0, v10, vcc')
    I('v_and_b32 v9, 2, v7'); I('v_cmp_eq_u32 vcc, 0, v9')
    I('v_mov_b32 v%d, 0' % SEL); I('v_mov_b32 v%d, 0' % (SEL + 1)); I('v_mov_b32 v%d, 0' % (SEL + 4)); I('v_mov_b32 v%d, 0' % (SEL + 5))
    I('v_cndmask_b32 v%d, 0, v10, vcc' % (SEL + 2)); I('v_cndmask_b32 v%d, v10, 0, vcc' % (SEL + 3))
    A.wait_vm('b')
    A.wait_lg()
    def bt(T2, b): return slot(T2 * 2 + b)
    for cl in range(3):
        for T2 in range(3):
            for b in range(2):
                d = bt(T2, b)
                I('v_mfma_f32_16x16x32_bf16 %s, %s, %s, %s' % (v(d, 4), v(w2f(T2, cl, b) + 4, 4), v(BFR[cl], 4), '0' if cl == 0 else v(d, 4)))
    I('s_mul_i32 s%d, s%d, 384' % (sT0, sW)); I('s_add_u32 s%d, s%d, %d' % (sT0, sT0, BIASP))
    I('v_add_u32 v7, s%d, v%d' % (sT0, vBp))
    I('v_add_u32 v%d, %d, v%d' % (vBp, BIASP, vBp))
    I('s_mov_b32 exec_lo, 0x00010001'); I('s_mov_b32 exec_hi, 0x00010001')
    for T2 in range(3):
        for b in range(2): I('ds_write_b128 v7, %s offset:%d' % (v(bt(T2, b), 4), T2 * 128 + 16 * b))
    execall()
    def unpack8(base):
        for k in range(4):
            I('v_lshlrev_b32 v%d, 16, v%d' % (base + 2 * k, base + 4 + k))
            I('v_and_b32 v%d, 0xffff0000, v%d' % (base + 2 * k + 1, base + 4 + k))
    A.wait_lg(); barrier()
    tmp = [slot(6 + k) for k in range(12)]
    for half in range(2):
        tiles = [(T2, b) for T2 in range(3) for b in range(2)][3 * half:3 * half + 3]
        for q, (T2, b) in enumerate(tiles):
            for w in range(4):
                I('ds_read_b128 %s, v%d offset:%d' % (v(tmp[q * 4 + w], 4), vBp, w * 384 + T2 * 128 + 16 * b), 'bp%d' % q)
        for q, (T2, b) in enumerate(tiles):
            A.wait_lg('bp%d' % q)
            d = bt(T2, b)
            for hh in (0, 2):
                I('v_pk_add_f32 %s, %s, %s' % (v(d + hh, 2), v(tmp[q * 4] + hh, 2), v(tmp[q * 4 + 1] + hh, 2)))
                I('v_pk_add_f32 %s, %s, %s' % (v(tmp[q * 4 + 2] + hh, 2), v(tmp[q * 4 + 2] + hh, 2), v(tmp[q * 4 + 3] + hh, 2)))
                I('v_pk_add_f32 %s, %s, %s' % (v(d + hh, 2), v(d + hh, 2), v(tmp[q * 4 + 2] + hh, 2)))
    I('v_mov_b32 v%d, v%d' % (vFac_c, vFac)); I('v_mov_b32 v%d, v%d' % (vAr_c, vAr)); I('v_mov_b32 v%d, v%d' % (vPoll2_c, vPoll2))
    for k in range(8): I('v_mov_b32 v%d, v%d' % (vG + k, G2 + k))
    A.wait_vm('xr')
    for k in range(4): I('v_mov_b32 v%d, v%d' % (slot(6) + k, xr_(9) + k))
    def cinit(d, x, cb):
        I('v_mfma_f32_16x16x32_bf16 %s, %s, %s, %s' % (v(d, 4), v(SEL + 2, 4), v(x, 4), v(cb[0], 4)))
        I('v_mfma_f32_16x16x32_bf16 %s, %s, %s, %s' % (v(d + 4, 4), v(SEL, 4), v(x, 4), v(cb[1], 4)))
    for i in range(3):
        for T2 in range(3): cinit(ca(i, T2), xr_(i * 3 + T2), (bt(T2, 0), bt(T2, 1)))
    for T2 in range(3):
        I('s_cmp_lg_u32 s%d, %d' % (sRT, T2))
        I('s_cbranch_scc1 L_rb%d' % T2)
        cinit(CR, slot(6), (bt(T2, 0), bt(T2, 1)))
        A.label('L_rb%d' % T2)
    for T2 in (1, 2, 0):
        for cl in range(3):
            for b in range(2): unpack8(w2f(T2, cl, b))

def totals():
    X0, X1, X2 = 10, 11, 0
    I('s_cmp_lg_u32 s%d, 0' % sW)
    I('s_cbranch_scc1 L_tot_done')
    I('s_mov_b32 s%d, %d' % (sCnt, SPIN))
    A.label('L_tot')
    A.raw('buffer_load_dwordx4 %s, v%d, %s, 0 offen sc1' % (v(vTot, 4), vPoll, srd(SWS)))
    A.raw('buffer_load_dwordx4 %s, v%d, %s, 0 offen offset:1024 sc1' % (v(vTot + 4, 4), vPoll2_c, srd(SWS)))
    A.raw('s_waitcnt vmcnt(0)')
    I('v_max3_u32 v%d, v%d, v%d, v%d' % (X0, vTot, vTot + 1, vTot + 2))
    I('v_max3_u32 v%d, v%d, v%d, v%d' % (X0, X0, vTot + 3, vTot + 4))
    I('v_max3_u32 v%d, v%d, v%d, v%d' % (X0, X0, vTot + 5, vTot + 6))
    I('v_max_u32 v%d, v%d, v%d' % (X0, X0, vTot + 7))
    I('v_cmp_eq_u32 vcc, -1, v%d' % X0)
    I('s_cbranch_vccz L_tot_got')
    I('s_sub_u32 s%d, s%d, 1' % (sCnt, sCnt)); I('s_cmp_lg_u32 s%d, 0' % sCnt)
    I('s_cbranch_scc1 L_tot')
    A.label('L_tot_got')
    stamp('totals got')
    I('s_mov_b32 s%d, %s' % (sT0, hx(f32(1.0 / (AS * AS)))))
    I('s_mov_b32 s%d, %s' % (sT1, hx(f32(1e-6))))
    I('v_mov_b32 v%d, s%d' % (X0, sT1))
    for k in range(8): I('v_fma_f32 v%d, v%d, s%d, v%d' % (vTot + k, vTot + k, sT0, X0))
    for k in range(8): I('v_sqrt_f32 v%d, v%d' % (vTot + k, vTot + k))
    I('v_add_f32 v%d, v%d, v%d' % (X1, vTot + 4, vTot + 5)); I('v_add_f32 v%d, v%d, v%d' % (X2, vTot + 6, vTot + 7))
    I('v_add_f32 v%d, v%d, v%d' % (X1, X1, X2))
    I('v_cmp_gt_u32 vcc, 32, v1')
    I('v_cndmask_b32 v%d, 0, v%d, vcc' % (X1, X1))
    I('v_add_f32 v%d, v%d, v%d' % (X2, vTot, vTot + 1)); I('v_add_f32 v%d, v%d, v%d' % (X1, X1, X2))
    I('v_add_f32 v%d, v%d, v%d' % (X2, vTot + 2, vTot + 3)); I('v_add_f32 v%d, v%d, v%d' % (X1, X1, X2))
    for ctl in ('row_shr:1', 'row_shr:2', 'row_shr:4', 'row_shr:8'):
        I('v_add_f32_dpp v%d, v%d, v%d %s row_mask:0xf bank_mask:0xf bound_ctrl:1' % (X1, X1, X1, ctl))
    I('v_add_f32_dpp v%d, v%d, v%d row_bcast:15 row_mask:0xa bank_mask:0xf' % (X1, X1, X1))
    I('v_add_f32_dpp v%d, v%d, v%d row_bcast:31 row_mask:0xc bank_mask:0xf' % (X1, X1, X1))
    I('v_readlane_b32 s%d, v%d, 63' % (sT2, X1))
    I('s_mov_b32 s%d, %s' % (sT0, hx(f32(1.0 / 384.0))))
    I('v_mov_b32 v%d, s%d' % (X1, sT2))
    I('v_fma_f32 v%d, v%d, s%d, v%d' % (X0, X1, sT0, X0))
    I('v_rcp_f32 v%d, v%d' % (X0, X0))
    I('s_mov_b32 s%d, %s' % (sT0, hx(f32(1.0 / AS))))
    I('v_mov_b32 v%d, s%d' % (X1, sT0))
    for k in range(8): I('v_mul_f32 v%d, v%d, v%d' % (vTot + k, vTot + k, X0))
    for k in range(8): I('v_fma_f32 v%d, v%d, v%d, v%d' % (vTot + k, vTot + k, vG + k, X1))
    I('ds_write_b128 v%d, %s' % (vSw, v(vTot, 4)))
    I('s_mov_b32 exec_hi, 0')
    I('ds_write_b128 v%d, %s offset:1024' % (vSw, v(vTot + 4, 4)))
    execall()
    A.wait_lg()
    A.label('L_tot_done')
    barrier()

FAC = [16, 24, 40]
def fac_read(cl):
    I('ds_read_b128 %s, v%d offset:%d' % (v(FAC[cl], 4), vFac_c, cl * 128), 'f%d' % cl)
    I('ds_read_b128 %s, v%d offset:%d' % (v(FAC[cl] + 4, 4), vFac_c, cl * 128 + 32), 'f%d' % cl)
def scale_frag(T2, cl, b, packed):
    r = w2f(T2, cl, b); F = FAC[cl]; out = []
    if packed:
        for k in range(4): out.append((4, 'v_pk_mul_f32 %s, %s, %s' % (v(r + 2 * k, 2), v(r + 2 * k, 2), v(F + 2 * k, 2))))
    else:
        for k in range(8): out.append((4, 'v_mul_f32 v%d, v%d, v%d' % (r + k, r + k, F + k)))
    for k in range(4): out.append((4, 'v_cvt_pk_bf16_f32 v%d, v%d, v%d' % (r + k, r + 2 * k, r + 2 * k + 1)))
    out.append((20, 'ds_write_b128 v%d, %s offset:%d' % (vW2sW, v(r, 4), ((T2 * 12 + cl) * 2 + b) * 1024), 'sw'))
    return out

def scale_first():
    fac_read(0); fac_read(1)
    order = [(0, 0), (0, 1), (1, 0), (1, 1), (2, 0), (2, 1)]
    for q, (cl, b) in enumerate(order):
        if b == 0: A.wait_lg('f%d' % cl)
        for it in scale_frag(0, cl, b, True): I(it[1], it[2] if len(it) > 2 else None)
        if q == 1: fac_read(2)
    A.wait_lg(); barrier()

def phaseC():
    AB = [48, 56, 64, 72]
    seq = []
    for T2 in (0, 1): seq += [('m', T2, c) for c in range(12)]
    seq += [('r', 0, c) for c in range(12)]
    seq += [('m', 2, c) for c in range(12)]
    def rd(k):
        kind, T2, c = seq[k]; buf = AB[k % 4]
        if kind == 'm':
            lo = (T2 * 12 + c) * 2048; r = vAr_c
            if lo >= 49152: r = vAr2; lo -= 49152
        else: lo = c * 2048; r = vArRem
        I('ds_read_b128 %s, v%d offset:%d' % (v(buf, 4), r, lo), 'a%d' % k)
        I('ds_read_b128 %s, v%d offset:%d' % (v(buf + 4, 4), r, lo + 1024), 'a%d' % k)
    fill = []; wq = []
    def epi(regs, addr, off):
        out = [(4, 'v_cvt_pk_bf16_f32 v%d, v%d, v%d' % (regs + k, regs + 2 * k, regs + 2 * k + 1)) for k in range(4)]
        out.append((8, 'buffer_store_dwordx4 %s, v%d, %s, 0 offen offset:%d' % (v(regs, 4), addr, srd(SOUT), off), 'st'))
        return out
    def emit_fill(budget):
        while fill and budget > 0:
            it = fill.pop(0)
            if callable(it): it(); continue
            if it[1].startswith('ds_write'):
                wq.append(it); continue
            I(it[1], it[2] if len(it) > 2 else None); budget -= it[0]
    def emit_writes():
        while wq:
            it = wq.pop(0); I(it[1], it[2])
    for k in range(3): rd(k)
    pending = []
    for k, (kind, T2, c) in enumerate(seq):
        if kind == 'm' and c == 0 and T2 < 2:
            for cl in range(3):
                for b in range(2): fill += scale_frag(T2 + 1, cl, b, False)
        if kind == 'm' and c == 9 and T2 < 2:
            emit_fill(10 ** 6); emit_writes()
            A.wait_lg('sw'); barrier()
        if k + 3 < len(seq): rd(k + 3)
        emit_writes()
        A.wait_lg('a%d' % k)
        buf = AB[k % 4]
        ms = []
        if kind == 'm':
            for i in range(3):
                for b in range(2):
                    d = ca(i, T2) + 4 * b
                    ms.append('v_mfma_f32_16x16x32_bf16 %s, %s, %s, %s' % (v(d, 4), v(buf + 4 * b, 4), a_(HM + i * 48 + c * 4, 4), v(d, 4)))
        else:
            for b in range(2):
                d = CR + 4 * b
                ms.append('v_mfma_f32_16x16x32_bf16 %s, %s, %s, %s' % (v(d, 4), v(buf + 4 * b, 4), a_(HR + c * 4, 4), v(d, 4)))
        for m in ms:
            I(m); emit_fill(8)
        if c == 11:
            if kind == 'm': pend = [epi(ca(i, T2), vOut[i], 64 * T2) for i in range(3)]
            else:
                def remstore():
                    I('s_cmp_eq_u32 s%d, 3' % sW)
                    I('s_cbranch_scc1 L_norem')
                    for kk in range(4): I('v_cvt_pk_bf16_f32 v%d, v%d, v%d' % (CR + kk, CR + 2 * kk, CR + 2 * kk + 1))
                    I('s_mov_b32 exec_lo, 0x000f000f'); I('s_mov_b32 exec_hi, 0x000f000f')
                    I('buffer_store_dwordx4 %s, v%d, %s, 0 offen' % (v(CR, 4), vOut[3], srd(SOUT)), 'st')
                    execall()
                    A.label('L_norem')
                pend = [[remstore]]
            pending = [x for p in pend for x in p]
        if c == 1 and k > 12 and pending:
            fill[0:0] = pending; pending = []
    for it in pending:
        if callable(it): it()
        else: I(it[1], it[2] if len(it) > 2 else None)

def dump_stamps():
    if not STAMPS: return
    I('s_waitcnt lgkmcnt(0)')
    I('s_cmp_lg_u32 s%d, 0' % sW)
    I('s_cbranch_scc1 L_end')
    I('s_lshl_b32 s%d, s2, 7' % sT0); I('s_add_u32 s%d, s%d, %d' % (sT0, sT0, WS_DBG))
    I('v_mov_b32 v12, s%d' % sT0)
    I('s_mov_b64 exec, 1')
    for k in range(nst[0]):
        I('v_mov_b32 v13, s%d' % (sStamp + k))
        I('buffer_store_dword v13, v12, %s, 0 offen offset:%d' % (srd(SWS), 4 * k))
    execall()

def main():
    prologue()
    if OPT['st_pro']: stamp('prologue end')
    conv_setup()
    if OPT['st_pro']: stamp('conv_setup')
    conv()
    arrive()
    stamp('phaseB start')
    phaseB()
    publish()
    if not OPT['st_conv']: stamp('published')
    A.wait_lg(); barrier()
    wait_issue()
    if not OPT['st_conv'] and not OPT['st_pro']: stamp('wait issued')
    reducer()
    wait_compute()
    if not OPT['st_conv']: stamp('waitwork done')
    totals()
    scale_first()
    if not OPT['st_conv'] and not OPT['st_pro']: stamp('scaled')
    phaseC()
    stamp('done')
    dump_stamps()
    if OPT['dbgt']:
        I('s_waitcnt vmcnt(0)')
        I('s_memtime s[84:85]'); I('s_memrealtime s[86:87]')
        I('s_waitcnt lgkmcnt(0)')
        I('s_sub_u32 s84, s84, s80'); I('s_sub_u32 s86, s86, s82')
        I('s_cmp_lg_u32 s%d, 0' % sW); I('s_cbranch_scc1 L_end')
        I('s_cmp_ge_u32 s2, 6'); I('s_cbranch_scc1 L_end')
        I('s_lshl_b32 s88, s2, 3'); I('s_add_u32 s88, s88, 8')
        I('v_mov_b32 v12, s88'); I('v_mov_b32 v14, s84'); I('v_mov_b32 v15, s86')
        I('s_mov_b64 exec, 1')
        I('buffer_store_dwordx2 v[14:15], v12, %s, 0 offen' % srd(SDBG))
        execall()
    A.label('L_end')
    I('s_endpgm')
    A.label('L_code_end')
    nn = A.fix_hazards()
    hdr = open('cdna_kernels/%s.s.ref' % NAME).read().split('; Override launch')[0]
    s = hdr
    s += "; Override launch geometry by editing the next line (default: block=256,\n"
    s += "; @launch grid=(256,1,1) block=(256,1,1) lds=%d\n" % LDS_BYTES
    s += "; Fused dwconv5x5 + LayerNorm + GEMM + GELU + GRN + GEMM; persistent, one workgroup (14x14 pixels) per CU.\n"
    s += '.amdgcn_target "amdgcn-amd-amdhsa--gfx950"\n.text\n.globl %s_kernel\n.p2align 8\n.type %s_kernel,@function\n%s_kernel:\n' % (NAME, NAME, NAME)
    body = A.text()
    if OPT['pref']: body = body.replace('CODE_LAST', '(L_code_end - L_pc - 4)')
    s += body
    s += '''.section .rodata,"a"
.p2align 6
.amdhsa_kernel %s_kernel
  .amdhsa_next_free_vgpr 512
  .amdhsa_next_free_sgpr 102
  .amdhsa_accum_offset 256
  .amdhsa_group_segment_fixed_size 0
  .amdhsa_kernarg_size 72
  .amdhsa_user_sgpr_count 2
  .amdhsa_user_sgpr_kernarg_segment_ptr 1
  .amdhsa_system_sgpr_workgroup_id_x 1
  .amdhsa_float_denorm_mode_32 3
.end_amdhsa_kernel
''' % NAME
    open(OUT, 'w').write(s)
    if STAMPS: open(OUT + '.names', 'w').write('\n'.join(stamp_names))
    print('instructions', A.count(), 'nops inserted', nn, 'bytes', len(s))
main()
```

```python
import re

REG_RE = re.compile(r'^(-|\|)?(abs\()?([vas])(\d+|\[(\d+):(\d+)\])')

def parse_reg(tok):
    t = tok.strip()
    t = t.lstrip('-').strip('|')
    if t in ('vcc',): return [('s', 106), ('s', 107)]
    if t == 'vcc_lo': return [('s', 106)]
    if t == 'vcc_hi': return [('s', 107)]
    if t == 'exec': return [('s', 126), ('s', 127)]
    if t == 'exec_lo': return [('s', 126)]
    if t == 'exec_hi': return [('s', 127)]
    if t == 'm0': return [('s', 124)]
    m = re.match(r'^([vas])(\d+)$', t)
    if m: return [(m.group(1), int(m.group(2)))]
    m = re.match(r'^([vas])\[(\d+):(\d+)\]$', t)
    if m: return [(m.group(1), i) for i in range(int(m.group(2)), int(m.group(3)) + 1)]
    return []

def split_ops(s):
    ops, depth, cur = [], 0, ''
    for ch in s:
        if ch in '[(': depth += 1
        if ch in '])': depth -= 1
        if ch == ',' and depth == 0:
            ops.append(cur.strip()); cur = ''
        else: cur += ch
    if cur.strip(): ops.append(cur.strip())
    out = []
    mods = []
    for o in ops:
        parts = o.split()
        out.append(parts[0]); mods += parts[1:]
    return out, mods

TRANS = ('v_exp_f32', 'v_rcp_f32', 'v_rsq_f32', 'v_sqrt_f32', 'v_log_f32', 'v_sin_f32', 'v_cos_f32')

class Ins:
    __slots__ = ('text', 'mn', 'ops', 'mods', 'defs', 'uses', 'kind', 'passes', 'srcC', 'comment')
    def __init__(self, text):
        self.text = text
        t = text.split(';')[0].strip()
        parts = t.split(None, 1)
        self.mn = parts[0]
        self.ops, self.mods = split_ops(parts[1]) if len(parts) > 1 else ([], [])
        self.defs, self.uses, self.passes, self.srcC = set(), set(), 0, set()
        mn, ops = self.mn, self.ops
        R = [parse_reg(o) for o in ops]
        def U(i):
            if i < len(R): self.uses.update(R[i])
        def D(i):
            if i < len(R): self.defs.update(R[i])
        if mn.startswith('v_mfma') or mn.startswith('v_smfmac'):
            self.kind = 'mfma'
            self.passes = 8 if '32x32' in mn else 4
            D(0); U(1); U(2)
            if mn.startswith('v_smfmac'):
                U(0); U(3); self.srcC = set(R[0])
            else:
                U(3); self.srcC = set(R[3])
        elif mn.startswith('v_cmp'):
            self.kind = 'valu'; D(0)
            for i in range(1, len(ops)): U(i)
        elif mn.startswith('v_readfirstlane') or mn.startswith('v_readlane'):
            self.kind = 'valu'; D(0)
            for i in range(1, len(ops)): U(i)
        elif mn.startswith('v_permlane') and 'swap' in mn:
            self.kind = 'valu'; D(0); D(1); U(0); U(1)
        elif mn.startswith('v_'):
            self.kind = 'valu'; D(0)
            for i in range(1, len(ops)): U(i)
            if mn.startswith(('v_fmac', 'v_pk_fmac', 'v_dot2c')) or '_dpp' in mn or 'v_writelane' in mn: U(0)
            if mn.startswith('v_cndmask') and len(ops) == 3: self.uses.update(parse_reg('vcc'))
            if mn.startswith(('v_add_co', 'v_sub_co', 'v_addc_co')): D(1)
        elif mn.startswith('ds_'):
            self.kind = 'ds'
            if mn.startswith(('ds_read', 'ds_bpermute', 'ds_permute', 'ds_swizzle')):
                D(0)
                for i in range(1, len(ops)): U(i)
            else:
                for i in range(len(ops)): U(i)
        elif mn.startswith(('buffer_', 'global_')):
            self.kind = 'vmem'
            is_lds = 'lds' in self.mods
            if 'load' in mn and not is_lds:
                D(0)
                for i in range(1, len(ops)): U(i)
            elif 'atomic' in mn and 'sc0' in self.mods:
                D(0)
                for i in range(len(ops)): U(i)
            else:
                for i in range(len(ops)): U(i)
            if is_lds: self.uses.add(('s', 124))
        elif mn.startswith('s_'):
            self.kind = 'salu'
            if mn in ('s_waitcnt', 's_nop', 's_barrier', 's_endpgm', 's_sleep', 's_setprio', 's_branch') or mn.startswith('s_cbranch'):
                pass
            elif mn.startswith(('s_cmp', 's_bitcmp')):
                for i in range(len(ops)): U(i)
            else:
                D(0)
                for i in range(1, len(ops)): U(i)
                if 'saveexec' in mn: self.defs.update(parse_reg('exec')); self.uses.update(parse_reg('exec'))
        else:
            raise ValueError('unknown instr ' + text)
    def states(self):
        if self.mn == 's_nop': return int(self.ops[0], 0) + 1
        return 1
    def is_trans(self): return self.mn.replace('_e32', '').replace('_e64', '') in TRANS
    def is_dpp(self): return '_dpp' in self.mn
    def is_permlane(self): return self.mn.startswith('v_permlane')
    def wide_store(self):
        return self.kind == 'vmem' and 'store' in self.mn and ('x3' in self.mn or 'x4' in self.mn)

def required_gap(p, c):
    need = 0
    pv = {r for r in p.defs if r[0] in 'va'}
    ps = {r for r in p.defs if r[0] == 's'}
    cu = c.uses; cd = c.defs
    if p.kind == 'valu':
        if pv & cu:
            if c.kind == 'mfma': need = max(need, 2)
            if c.is_dpp() or c.is_permlane(): need = max(need, 2)
            if c.mn.startswith(('v_readfirstlane', 'v_readlane')): need = max(need, 1)
            if p.is_trans() and c.kind in ('valu',) : need = max(need, 1)
        if c.is_dpp() and (pv & cd): need = max(need, 2) if (pv & cu) else need
        if ps & cu:
            if c.kind == 'valu': need = max(need, 2)
            if c.kind == 'vmem': need = max(need, 5)
            if c.mn.startswith(('v_readlane', 'v_writelane')): need = max(need, 4)
    if p.kind == 'mfma':
        d = pv
        n_other = 8 if p.passes == 4 else 12
        if c.kind == 'mfma':
            if d & c.srcC:
                same = (d == c.srcC) and (p.passes == c.passes)
                if not same: need = max(need, 6 if p.passes == 4 else 10)
            ab = cu - c.srcC
            if d & ab: need = max(need, n_other)
            if (d & cd) and not (d & c.srcC): need = max(need, n_other)
        else:
            if d & (cu | cd): need = max(need, n_other)
        if c.kind == 'valu' and (p.srcC & cd): need = max(need, 3 if p.passes == 4 else 7)
    if p.kind == 'salu' and ('s', 124) in p.defs and c.kind == 'vmem' and 'lds' in c.mods: need = max(need, 1)
    if p.wide_store() and c.kind == 'valu':
        data = set(parse_reg(p.ops[0])) if p.mn.startswith('buffer') else set(parse_reg(p.ops[1]))
        if data & cd: need = max(need, 2)
    return need

class Asm:
    def __init__(self):
        self.items = []
        self.vm = []
        self.lg = []
    def capture(self, fn):
        saved = self.items; self.items = []
        fn()
        got = self.items; self.items = saved
        for it in got:
            assert not isinstance(it, str) and it.kind in ('valu', 'salu'), it
        return got
    def emit_items(self, lst, n):
        for _ in range(min(n, len(lst))): self.items.append(lst.pop(0))
    def raw(self, s): self.items.append(s)
    def label(self, name): self.items.append(name + ':')
    def c(self, s): self.items.append('; ' + s)
    def __call__(self, text, tag=None):
        ins = Ins(text)
        self.items.append(ins)
        if ins.kind == 'vmem': self.vm.append(tag)
        elif ins.kind == 'ds': self.lg.append(tag)
        return ins
    def wait_vm(self, tag=None):
        if tag is None: n = 0
        else:
            idx = [i for i, t in enumerate(self.vm) if t == tag]
            if not idx: return
            n = len(self.vm) - 1 - idx[-1]
        n = min(n, 63)
        self('s_waitcnt vmcnt(%d)' % n)
        self.vm = self.vm[len(self.vm) - n:] if n else []
    def wait_lg(self, tag=None):
        if tag is None: n = 0
        else:
            idx = [i for i, t in enumerate(self.lg) if t == tag]
            if not idx: return
            n = len(self.lg) - 1 - idx[-1]
        n = min(n, 15)
        self('s_waitcnt lgkmcnt(%d)' % n)
        self.lg = self.lg[len(self.lg) - n:] if n else []
    def wait_all(self):
        self('s_waitcnt vmcnt(0) lgkmcnt(0)'); self.vm = []; self.lg = []
    def fix_hazards(self, window=40):
        out = []
        hist = []
        nins = 0
        open_br = {}
        for it in self.items:
            if isinstance(it, str):
                out.append(it)
                if it.endswith(':'):
                    lab = it[:-1]
                    if lab in open_br:
                        for k in range(open_br.pop(lab) + 1, len(hist)): hist[k] = (hist[k][0], 0)
                continue
            need = 0; dist = 0
            for p, cr in reversed(hist[-window:]):
                g = required_gap(p, it)
                if g > dist: need = max(need, g - dist)
                dist += cr
                if dist > 20: break
            while need > 0:
                k = min(need, 16)
                nop = Ins('s_nop %d' % (k - 1)); out.append(nop); hist.append((nop, nop.states())); need -= k; nins += 1
            out.append(it); hist.append((it, it.states()))
            if it.mn.startswith('s_cbranch') or it.mn == 's_branch':
                lab = it.ops[0]
                if lab not in open_br: open_br[lab] = len(hist) - 1
        self.items = out
        return nins
    def text(self):
        s = []
        for it in self.items:
            if isinstance(it, str):
                s.append(it if it.endswith(':') or it.startswith(('.', ';')) else '  ' + it)
            else: s.append('  ' + it.text)
        return '\n'.join(s) + '\n'
    def count(self):
        return sum(1 for it in self.items if not isinstance(it, str))
```

```python
import sys, math, struct
from asmlib import Asm

NAME = "standalone__modern_conv_block_slak__vision"
OPT = dict(stf='', z_nofill=0, z_nobar=0, z_noepi=0, q_nofin=0, q_nostats=0, q_now1=0, q_noset=0, q_nosmf=0, q_nord=0, q_nozero=0, split=1, sg='m', b_nohw=0, b_nohr=0, b_noy=0, b_nobar=0, b_nox=0, b_noex=0, b_st=0, dbgt=0, st_pro=0, debug=0, stamps=0, pref=1, ahead=12, st_conv=0, x_nofin=0, x_nostats=0, x_now1=0, x_nobar=0, x_nosmf=0)
for a in sys.argv[1:]:
    if '=' in a and not a.startswith('out='):
        k, v_ = a.split('='); OPT[k] = int(v_) if v_.lstrip('-').isdigit() else v_
OUT = [a[4:] for a in sys.argv[1:] if a.startswith('out=')]
OUT = OUT[0] if OUT else "cdna_kernels/%s.s" % NAME
DEBUG = OPT['debug']; STAMPS = OPT['stamps']

def f32(x): return struct.unpack('<I', struct.pack('<f', x))[0]
def hx(x): return '0x%08x' % (x & 0xffffffff)

C1 = -2.0 * math.log2(math.e) * math.sqrt(2.0 / math.pi)
C2 = C1 * 0.044715
AS = -((-C2) ** (1.0 / 3.0))
KK = C1 / AS

XROW = 3584
XS = 0
DWS = 18 * XROW;   DWS_W = 1280
W1S = DWS + 4 * DWS_W;   W1S_W = 18432
STATS = W1S + 4 * W1S_W
YB = 0;            YP = 208
RING = 40960;      SETSZ = 49152
REM = 0
W2RAW = 90112;     W2RAW_W = 18432
W2S = 0
FLAGS = 40768
W2ST = 139264; W2ST_W = 6144
SFAC = 73728
BIASP = 4096
REDB = 8192
LDS_BYTES = 163840
assert STATS + 8192 <= LDS_BYTES
WS_PART = 0; WS_TOT = 0x80000; WS_DBG = 0x100000
NREP = 16; NRED = 24
SPIN = 400000

sW = 22
SX, SDW, SW1, SW2, SOUT, SWS, SDBG, SG, SB = 24, 28, 32, 36, 40, 44, 48, 52, 56
sGY0, sGX0 = 60, 61
sT0, sT1, sT2, sT3, sT4, sT5 = 62, 63, 64, 65, 66, 67
sEX = 68
sMc4 = 70; sM14 = 72; sK = 74
sTY, sTX = 76, 77
sCnt = 78; sRT = 79
sPoll = 69
sStamp = 80
sXM, sXO = 23, 3
sW1M, sW1O = 100, 101
def srd(b): return 's[%d:%d]' % (b, b + 3)
def sp(b): return 's[%d:%d]' % (b, b + 1)
def v(b, n=1): return 'v%d' % b if n == 1 else 'v[%d:%d]' % (b, b + n - 1)
def a_(b, n=1): return 'a%d' % b if n == 1 else 'a[%d:%d]' % (b, b + n - 1)

A = Asm(); I = A
nst = [0]; stamp_names = []
def stamp(name='', grp='m'):
    if STAMPS and any(ch in grp for ch in OPT['sg']):
        k = nst[0]; nst[0] += 1
        assert k < 16
        stamp_names.append(name)
        A.wait_lg()
        I('%s %s' % ('s_memtime' if STAMPS == 2 else 's_memrealtime', sp(98)))
        I('s_waitcnt lgkmcnt(0)')
        I('s_mov_b32 s%d, s98' % (sStamp + k))
def barrier(): I('s_barrier')

vYr, vYrem = 2, 3
vHW = [[4, 5], [6, 7]]
vHR = [8, 9]
vRemW, vRemR = 10, 11
vOut = [12, 13, 14, 15]
vH, vV1, vV2, vStW, vStR, vY = 16, 17, 18, 19, 20, 21
vW1 = 22
vChk = 30; vChkA = 31
vAr, vFac, vW2r, vBp, vPoll2, vBa = 23, 24, 25, 26, 27, 28
vXo = 240; vW1o = [241, 242, 243]; vPf = 244; vPfD = 245
AC = 32; vIDX = 80; BH = 84; BV = 108; DC = 132; TS = 216; FN = 224
def ac(o, f): return AC + (o * 4 + f) * 4
def dc(t, o): return DC + (t * 3 + o) * 4
W1F = 32
def w1f(t, kc): return W1F + (t * 6 + kc) * 4
ACC = [104, 120]; TT = 136; PP = 152; SQ = 160; RS = 244
YA = [192, 216]; HM = 0; HR = 144; YR = 144; ACCR = 240

def mk(b, p, n):
    I('s_mov_b32 s%d, s%d' % (b, p)); I('s_and_b32 s%d, s%d, 0xffff' % (b + 1, p + 1))
    I('s_mov_b32 s%d, %s' % (b + 2, hx(n))); I('s_mov_b32 s%d, 0x20000' % (b + 3))

xrow_next = [0]
vXo2 = 246
def x_dma(npairs):
    for _ in range(npairs):
        r = xrow_next[0]
        if r > 17: return
        xrow_next[0] += 2
        I('s_mov_b32 m0, s%d' % sXM)
        if r == 0:
            I('s_cmp_lt_i32 s%d, 0' % sXO)
            I('s_cselect_b32 s%d, 2.0, s%d' % (sT3, sXO)); so = sT3
        else: so = sXO
        I('buffer_load_dwordx4 v%d, %s, s%d offen lds' % (vXo, srd(SX), so), 'x%d' % r)
        I('buffer_load_dwordx4 v%d, %s, s%d offen offset:%d lds' % (vXo2, srd(SX), so, XROW), 'x%d' % (r + 1))
        if r < 16:
            I('s_add_u32 s%d, s%d, %d' % (sXM, sXM, 2 * XROW)); I('s_add_u32 s%d, s%d, %d' % (sXO, sXO, 2 * 43008))
def exec54(): I('s_mov_b32 exec_hi, 0x003fffff')
def execall(): I('s_mov_b64 exec, -1')
w1_next = [0]
def w1_dma(c):
    G = w1_next[0]
    if G >= 6 or OPT['q_now1']: return
    if c == 0: I('s_mov_b32 m0, s%d' % sW1M)
    I('buffer_load_dwordx4 v%d, %s, s%d offen offset:%d lds' % (vW1o[c], srd(SW1), sW1O, 1024 * c), 'w1')
    if c == 2:
        w1_next[0] += 1
        if G < 5:
            I('s_add_u32 s%d, s%d, 3072' % (sW1M, sW1M)); I('s_add_u32 s%d, s%d, %d' % (sW1O, sW1O, 16 * 768))

def prologue():
    T = 216
    I('s_cmp_ge_u32 s2, 256')
    I('s_cbranch_scc1 L_end')
    I('s_load_dwordx16 s[4:19], s[0:1], 0')
    I('s_load_dwordx2 s[20:21], s[0:1], 64')
    if OPT['dbgt']:
        I('s_memtime s[80:81]'); I('s_memrealtime s[82:83]')
    if STAMPS:
        I('%s %s' % ('s_memtime' if STAMPS == 2 else 's_memrealtime', sp(98)))
        nst[0] += 1; stamp_names.append('start')
    if OPT['pref']:
        I('s_getpc_b64 %s' % sp(sT4))
        A.label('L_pc')
        I('s_lshr_b32 s%d, s2, 3' % sT0); I('s_lshl_b32 s%d, s%d, 10' % (sT0, sT0))
        I('v_lshrrev_b32 v%d, 6, v0' % vPf); I('v_lshlrev_b32 v%d, 8, v%d' % (vPf, vPf))
        I('v_and_b32 v1, 1, v0'); I('v_lshl_add_u32 v%d, v1, 7, v%d' % (vPf, vPf))
        I('v_add_u32 v%d, s%d, v%d' % (vPf, sT0, vPf))
        I('v_min_u32 v%d, CODE_LAST, v%d' % (vPf, vPf))
        I('s_mov_b64 exec, 3')
        I('global_load_dword v%d, v%d, %s' % (vPfD, vPf, sp(sT4)), 'pf')
        execall()
    I('v_and_b32 v1, 63, v0')
    I('v_lshrrev_b32 v%d, 6, v0' % T)
    I('s_and_b32 s%d, s2, 7' % sT0)
    I('s_lshr_b32 s%d, s2, 3' % sT1)
    I('v_readfirstlane_b32 s%d, v%d' % (sW, T))
    I('s_lshr_b32 s%d, s%d, 1' % (sT2, sT0)); I('s_lshl_b32 s%d, s%d, 2' % (sT2, sT2))
    I('s_lshr_b32 s%d, s%d, 3' % (sT3, sT1)); I('s_add_u32 s%d, s%d, s%d' % (sTY, sT2, sT3))
    I('s_and_b32 s%d, s%d, 1' % (sT2, sT0)); I('s_lshl_b32 s%d, s%d, 3' % (sT2, sT2))
    I('s_and_b32 s%d, s%d, 7' % (sT3, sT1)); I('s_add_u32 s%d, s%d, s%d' % (sTX, sT2, sT3))
    I('s_mul_i32 s%d, s%d, 14' % (sGY0, sTY)); I('s_sub_u32 s%d, s%d, 2' % (sGY0, sGY0))
    I('s_mul_i32 s%d, s%d, 14' % (sGX0, sTX)); I('s_sub_u32 s%d, s%d, 2' % (sGX0, sGX0))
    I('v_mul_u32_u24 v%d, 57, v1' % T); I('v_lshrrev_b32 v%d, 10, v%d' % (T, T))
    I('v_mul_u32_u24 v%d, 18, v%d' % (T + 1, T)); I('v_sub_u32 v%d, v1, v%d' % (T + 1, T + 1))
    I('v_add_u32 v%d, s%d, v%d' % (T + 1, sGX0, T + 1))
    I('s_mul_i32 s%d, s%d, 48' % (sT0, sW))
    I('v_mul_i32_i24 v%d, 192, v%d' % (T + 2, T + 1))
    I('v_lshl_add_u32 v%d, v%d, 4, v%d' % (T + 2, T, T + 2))
    I('v_add_u32 v%d, s%d, v%d' % (T + 2, sT0, T + 2))
    I('v_mov_b32 v%d, 0x80000000' % (T + 3))
    I('v_cmp_gt_u32 vcc, 224, v%d' % (T + 1))
    I('v_cndmask_b32 v%d, v%d, v%d, vcc' % (vXo, T + 3, T + 2))
    I('v_add_u32 v%d, %d, v%d' % (vXo2, 43008 - XROW, vXo))
    I('v_mul_u32_u24 v%d, 171, v1' % T); I('v_lshrrev_b32 v%d, 9, v%d' % (T, T))
    I('v_mul_u32_u24 v%d, 3, v%d' % (T + 1, T)); I('v_sub_u32 v%d, v1, v%d' % (T + 1, T + 1))
    I('v_mul_u32_u24 v%d, 192, v%d' % (T, T)); I('v_lshl_add_u32 v%d, v%d, 4, v%d' % (T, T + 1, T))
    I('v_add_u32 v%d, s%d, v%d' % (T + 4, sT0, T))
    I('v_add_u32 v%d, 64, v1' % (T + 1))
    I('v_mul_u32_u24 v%d, 171, v%d' % (T, T + 1)); I('v_lshrrev_b32 v%d, 9, v%d' % (T, T))
    I('v_mul_u32_u24 v%d, 3, v%d' % (T + 2, T)); I('v_sub_u32 v%d, v%d, v%d' % (T + 2, T + 1, T + 2))
    I('v_mul_u32_u24 v%d, 192, v%d' % (T, T)); I('v_lshl_add_u32 v%d, v%d, 4, v%d' % (T, T + 2, T))
    I('v_add_u32 v%d, s%d, v%d' % (T, sT0, T))
    I('v_cmp_gt_u32 vcc, 75, v%d' % (T + 1))
    I('v_cndmask_b32 v%d, v%d, v%d, vcc' % (T + 5, T + 3, T))
    I('s_mul_i32 s%d, s%d, 864' % (sXM, sW))
    I('s_mul_i32 s%d, s%d, 43008' % (sXO, sGY0))
    I('s_mul_i32 s%d, s%d, %d' % (sT1, sW, DWS_W)); I('s_add_u32 s%d, s%d, %d' % (sT1, sT1, DWS))
    I('s_add_u32 s%d, s%d, 1024' % (sT2, sT1))
    I('s_waitcnt lgkmcnt(0)')
    if STAMPS: I('s_mov_b32 s%d, s98' % sStamp)
    mk(SDW, 6, 4800); mk(SX, 4, 9633792)
    I('s_mov_b32 m0, s%d' % sT1)
    I('buffer_load_dwordx4 v%d, %s, 0 offen lds' % (T + 4, srd(SDW)), 'dw')
    I('s_mov_b32 m0, s%d' % sT2)
    I('s_mov_b32 exec_lo, 0xffff'); I('s_mov_b32 exec_hi, 0')
    I('buffer_load_dwordx4 v%d, %s, 0 offen lds' % (T + 5, srd(SDW)), 'dw')
    execall()
    def w1_off():
        for c in range(3):
            I('v_add_u32 v%d, %d, v1' % (T + 8, 64 * c))
            I('v_mul_u32_u24 v%d, 171, v%d' % (T + 9, T + 8)); I('v_lshrrev_b32 v%d, 11, v%d' % (T + 9, T + 9))
            I('v_mul_u32_u24 v%d, 12, v%d' % (T + 10, T + 9)); I('v_sub_u32 v%d, v%d, v%d' % (T + 10, T + 8, T + 10))
            I('v_mul_u32_u24 v%d, 768, v%d' % (T + 9, T + 9))
            I('v_lshl_add_u32 v%d, v%d, 4, v%d' % (vW1o[c], T + 10, T + 9))
            if c: I('v_subrev_u32 v%d, %d, v%d' % (vW1o[c], 1024 * c, vW1o[c]))
        I('s_mul_i32 s%d, s%d, 192' % (sW1O, sW))
        I('s_mul_i32 s%d, s%d, %d' % (sW1M, sW, W1S_W)); I('s_add_u32 s%d, s%d, %d' % (sW1M, sW1M, W1S))
    for p in range(192): assert (p * 171) >> 11 == p // 12
    pend = A.capture(conv_setup) + A.capture(later_setup) + A.capture(w1_off)
    npair = OPT['ahead'] // 2
    per = -(-len(pend) // npair)
    for k in range(npair):
        exec54(); x_dma(1); execall()
        A.emit_items(pend, per)
    assert not pend
    stamp('x issued', 'mp')
    mk(SW1, 8, 73728); mk(SW2, 10, 73728)
    mk(SWS, 20, 0x200000 if (DEBUG or STAMPS) == 0 else 0x8000000)
    if OPT['pref']:
        I('s_lshr_b32 s%d, s2, 3' % sT0); I('s_lshl_b32 s%d, s%d, 2' % (sT0, sT0)); I('s_add_u32 s%d, s%d, s%d' % (sT0, sT0, sW))
        I('s_mul_i32 s%d, s%d, 640' % (sT1, sT0))
        I('v_lshlrev_b32 v%d, 7, v1' % vPf); I('v_add_u32 v%d, s%d, v%d' % (vPf, sT1, vPf))
        I('s_mov_b64 exec, 31')
        I('buffer_load_dword v%d, v%d, %s, 0 offen' % (vPfD, vPf, srd(SW1)), 'pf')
        I('buffer_load_dword v%d, v%d, %s, 0 offen' % (vPfD, vPf, srd(SW2)), 'pf')
        execall()
    mk(SDBG, 18, 256); mk(SOUT, 16, 9633792); mk(SG, 12, 768); mk(SB, 14, 768)

def conv_setup():
    T = 216
    n_, g_, g1, sg = T, T + 1, T + 2, T + 3
    t0, t1, t2 = T + 4, T + 5, T + 6
    I('v_and_b32 v%d, 15, v1' % n_); I('v_lshrrev_b32 v%d, 4, v1' % g_)
    I('v_and_b32 v%d, 1, v%d' % (g1, g_)); I('v_lshrrev_b32 v%d, 1, v%d' % (sg, g_))
    I('s_mul_i32 s%d, s%d, 864' % (sT0, sW))
    I('v_add_u32 v%d, v%d, v%d' % (t0, n_, g_)); I('v_lshlrev_b32 v%d, 4, v%d' % (t0, t0))
    I('v_add_u32 v%d, s%d, v%d' % (vH, sT0, t0))
    I('v_add_u32 v%d, 4, v%d' % (t1, n_)); I('v_lshlrev_b32 v%d, 4, v%d' % (t1, t1)); I('v_add_u32 v%d, s%d, v%d' % (t1, sT0, t1))
    I('v_mul_u32_u24 v%d, %d, v%d' % (t0, XROW, g_)); I('v_add_u32 v%d, v%d, v%d' % (vV1, t0, t1))
    I('v_add_u32 v%d, 4, v%d' % (t0, g1)); I('v_mul_u32_u24 v%d, %d, v%d' % (t0, XROW, t0)); I('v_add_u32 v%d, v%d, v%d' % (vV2, t0, t1))
    I('v_lshl_add_u32 v%d, v%d, 4, v%d' % (t0, sg, n_)); I('v_lshlrev_b32 v%d, 6, v%d' % (t0, t0))
    I('v_add_u32 v%d, %d, v%d' % (vStR, STATS, t0))
    I('s_lshl_b32 s%d, s%d, 4' % (sT1, sW))
    I('v_lshl_add_u32 v%d, v%d, 3, v%d' % (t0, g1, vStR)); I('v_add_u32 v%d, s%d, v%d' % (vStW, sT1, t0))
    I('v_mul_u32_u24 v%d, 14, v%d' % (t0, sg)); I('v_add_u32 v%d, v%d, v%d' % (t0, t0, n_))
    I('v_mul_u32_u24 v%d, %d, v%d' % (t0, YP, t0)); I('v_lshl_add_u32 v%d, v%d, 3, v%d' % (t0, g1, t0))
    I('s_mul_i32 s%d, s%d, 48' % (sT1, sW)); I('v_add_u32 v%d, s%d, v%d' % (vY, sT1, t0))
    I('s_mov_b32 s%d, 0x0f0f0f0f' % sMc4); I('s_mov_b32 s%d, 0x0f0f0f0f' % (sMc4 + 1))
    I('s_mov_b32 s%d, 0x3fff3fff' % sM14); I('s_mov_b32 s%d, 0x3fff3fff' % (sM14 + 1))
    sm, cb, zs, gh = T + 7, T + 8, T + 9, T + 10
    I('v_lshrrev_b32 v%d, 3, v%d' % (sm, n_)); I('v_and_b32 v%d, 7, v%d' % (cb, n_))
    I('s_mul_i32 s%d, s%d, %d' % (sT1, sW, DWS_W)); I('s_add_u32 s%d, s%d, %d' % (sT1, sT1, DWS))
    I('v_lshl_add_u32 v%d, v%d, 1, s%d' % (cb, cb, sT1))
    I('v_add_u32 v%d, %d, v%d' % (zs, 75 * 16, cb))
    I('v_and_b32 v%d, 3, v%d' % (t0, n_)); I('v_mul_u32_u24 v%d, 0x5555, v%d' % (vIDX, t0))
    for f in range(4):
        for hlf in range(2):
            dst = 22 + f * 2 + hlf
            if f < 3:
                I('v_sub_u32 v%d, v%d, v%d' % (t0, sg, sm))
                if f: I('v_add_u32 v%d, %d, v%d' % (t0, 2 * f, t0))
                I('v_mul_i32_i24 v%d, 5, v%d' % (t1, t0))
                I('v_lshl_add_u32 v%d, v%d, 1, v%d' % (t1, g1, t1))
                if hlf: I('v_add_u32 v%d, 1, v%d' % (t1, t1))
            else:
                I('v_lshlrev_b32 v%d, 1, v%d' % (t0, g_)); I('v_sub_u32 v%d, v%d, v%d' % (t0, t0, sm))
                if hlf: I('v_add_u32 v%d, 1, v%d' % (t0, t0))
                I('v_mul_i32_i24 v%d, 5, v%d' % (t1, t0)); I('v_add_u32 v%d, 4, v%d' % (t1, t1))
            I('v_mul_i32_i24 v%d, 48, v%d' % (t1, t1)); I('v_add_u32 v%d, v%d, v%d' % (t1, cb, t1))
            I('v_cmp_gt_u32 vcc, 5, v%d' % t0)
            I('v_cndmask_b32 v%d, v%d, v%d, vcc' % (dst, zs, t1))

def later_setup():
    T = 228
    m_, hf, t0, t1, t2 = T, T + 1, T + 2, T + 3, T + 4
    I('v_and_b32 v%d, 31, v1' % m_); I('v_lshrrev_b32 v%d, 5, v1' % hf)
    I('v_and_b32 v%d, 0x13, v%d' % (t0, m_))
    I('v_and_b32 v%d, 4, v%d' % (t1, m_)); I('v_lshl_or_b32 v%d, v%d, 1, v%d' % (t0, t1, t0))
    I('v_and_b32 v%d, 8, v%d' % (t1, m_)); I('v_lshrrev_b32 v%d, 1, v%d' % (t1, t1)); I('v_or_b32 v%d, v%d, v%d' % (t0, t0, t1))
    I('v_mul_u32_u24 v%d, %d, v%d' % (t0, YP, t0)); I('v_lshl_add_u32 v%d, v%d, 4, v%d' % (vYr, hf, t0))
    I('v_bfe_u32 v%d, v%d, 2, 1' % (t0, m_)); I('v_and_b32 v%d, 1, v%d' % (t1, m_))
    I('v_lshl_add_u32 v%d, v%d, 1, v%d' % (t0, t0, t1)); I('v_add_u32 v%d, 192, v%d' % (t0, t0))
    I('v_mul_u32_u24 v%d, %d, v%d' % (t0, YP, t0)); I('v_lshl_add_u32 v%d, v%d, 4, v%d' % (vYrem, hf, t0))
    I('s_mul_i32 s%d, s%d, %d' % (sT0, sW, 96 * 128)); I('s_add_u32 s%d, s%d, %d' % (sT0, sT0, RING))
    I('v_lshlrev_b32 v%d, 7, v%d' % (t0, m_)); I('v_add_u32 v%d, s%d, v%d' % (t0, sT0, t0))
    I('v_and_b32 v%d, 7, v%d' % (t1, m_)); I('v_xor_b32 v%d, v%d, v%d' % (t1, t1, hf))
    for jp in range(2):
        for s in range(2):
            I('v_xor_b32 v%d, %d, v%d' % (t2, 4 * jp + 2 * s, t1))
            I('v_lshl_add_u32 v%d, v%d, 4, v%d' % (vHW[jp][s], t2, t0))
    I('s_mul_i32 s%d, s%d, %d' % (sT0, sW, 96 * 8))
    I('v_lshlrev_b32 v%d, 3, v%d' % (t0, m_)); I('v_lshl_add_u32 v%d, v%d, 2, v%d' % (t0, hf, t0))
    I('v_add_u32 v%d, s%d, v%d' % (vRemW, sT0, t0))
    g_, rr, cc = T, T + 1, T + 5
    I('v_lshrrev_b32 v%d, 4, v1' % g_); I('v_bfe_u32 v%d, v1, 2, 2' % rr); I('v_and_b32 v%d, 3, v1' % cc)
    I('v_lshrrev_b32 v%d, 1, v%d' % (t0, g_)); I('v_lshlrev_b32 v%d, 4, v%d' % (t0, t0))
    I('v_and_b32 v%d, 1, v%d' % (t1, g_)); I('v_lshl_add_u32 v%d, v%d, 2, v%d' % (t1, t1, rr))
    I('v_add_u32 v%d, v%d, v%d' % (t0, t0, t1))
    I('v_lshlrev_b32 v%d, 3, v%d' % (vRemR, t0))
    I('s_lshl_b32 s%d, s%d, 1' % (sT0, sW))
    I('v_lshrrev_b32 v%d, 1, v%d' % (t2, cc)); I('v_add_u32 v%d, s%d, v%d' % (t2, sT0, t2)); I('v_xor_b32 v%d, v%d, v%d' % (t2, t2, t1))
    I('v_lshlrev_b32 v%d, 7, v%d' % (t0, t0)); I('v_lshl_add_u32 v%d, v%d, 4, v%d' % (t0, t2, t0))
    I('v_and_b32 v%d, 1, v%d' % (t2, cc)); I('v_lshl_add_u32 v%d, v%d, 3, v%d' % (t0, t2, t0))
    I('v_add_u32 v%d, %d, v%d' % (vHR[0], RING, t0)); I('v_add_u32 v%d, %d, v%d' % (vHR[1], RING + SETSZ, t0))
    I('s_mov_b32 s%d, %s' % (sK, hx(f32(KK)))); I('s_mov_b32 s%d, %s' % (sK + 1, hx(f32(KK))))
    n_ = T + 1
    I('v_and_b32 v%d, 15, v1' % n_)
    I('s_mul_i32 s%d, s%d, 14' % (sT2, sTY)); I('s_mul_i32 s%d, s%d, 14' % (sT3, sTX))
    I('s_mul_i32 s%d, s%d, 224' % (sT2, sT2)); I('s_add_u32 s%d, s%d, s%d' % (sT2, sT2, sT3))
    I('s_mul_i32 s%d, s%d, 192' % (sT2, sT2))
    I('s_lshl_b32 s%d, s%d, 4' % (sT3, sW))
    for i in range(4):
        if i < 3:
            I('v_add_u32 v%d, s%d, v%d' % (t0, sT3, n_))
            if i: I('v_add_u32 v%d, %d, v%d' % (t0, 64 * i, t0))
        else:
            I('v_and_b32 v%d, 3, v%d' % (t0, n_)); I('v_add_u32 v%d, 192, v%d' % (t0, t0))
        I('v_mul_u32_u24 v%d, 4682, v%d' % (t1, t0)); I('v_lshrrev_b32 v%d, 16, v%d' % (t1, t1))
        I('v_mul_u32_u24 v%d, 14, v%d' % (t2, t1)); I('v_sub_u32 v%d, v%d, v%d' % (t2, t0, t2))
        I('v_mul_u32_u24 v%d, 224, v%d' % (t1, t1)); I('v_add_u32 v%d, v%d, v%d' % (t1, t1, t2))
        I('v_mul_u32_u24 v%d, 192, v%d' % (t1, t1)); I('v_lshl_add_u32 v%d, v%d, 4, v%d' % (t1, g_, t1))
        I('v_add_u32 v%d, s%d, v%d' % (vOut[i], sT2, t1))
    for p in range(208): assert (p * 4682) >> 16 == p // 14
    I('s_min_u32 s%d, s%d, 2' % (sRT, sW))
    I('s_lshl_b32 s%d, s%d, 6' % (sT5, sRT))
    I('v_add_u32 v%d, s%d, v%d' % (vOut[3], sT5, vOut[3]))
    I('v_and_b32 v%d, 3, v1' % vChkA); I('v_lshlrev_b32 v%d, 6, v%d' % (vChkA, vChkA))

def phaseC_addr():
    T = 232
    g_, ro, ch, t0 = T, T + 1, T + 2, T + 3
    I('v_lshlrev_b32 v%d, 4, v1' % vAr)
    I('v_lshrrev_b32 v%d, 4, v1' % g_)
    I('v_lshrrev_b32 v%d, 1, v%d' % (ro, g_)); I('v_lshlrev_b32 v%d, 4, v%d' % (ro, ro))
    I('v_and_b32 v%d, 1, v%d' % (t0, g_)); I('v_lshl_add_u32 v%d, v%d, 2, v%d' % (ro, t0, ro))
    I('s_mul_i32 s%d, s%d, 96' % (sT3, sW)); I('v_add_u32 v%d, s%d, v%d' % (ch, sT3, ro))
    I('v_lshlrev_b32 v%d, 1, v%d' % (vBa, ch))
    I('v_lshlrev_b32 v%d, 2, v%d' % (vFac, ch)); I('v_add_u32 v%d, %d, v%d' % (vFac, SFAC, vFac))
    I('v_bfe_u32 v%d, v1, 2, 2' % t0); I('v_add_u32 v%d, v%d, v%d' % (ro, ro, t0)); I('v_mul_u32_u24 v%d, 192, v%d' % (ro, ro))
    I('v_and_b32 v%d, 3, v1' % t0); I('v_lshl_add_u32 v%d, v%d, 4, v%d' % (ro, t0, ro))
    I('s_mul_i32 s%d, s%d, %d' % (sT0, sW, W2ST_W)); I('s_add_u32 s%d, s%d, %d' % (sW2M, sT0, W2ST))
    I('v_add_u32 v%d, s%d, v%d' % (vW2r, sW2M, ro))
    I('s_add_u32 s%d, s%d, 4096' % (sW2M2, sW2M))
    I('s_mul_i32 s%d, s%d, %d' % (sW2O, sW, W2RAW_W)); I('s_add_u32 s%d, s%d, 4096' % (sW2O2, sW2O))
    I('s_and_b32 s%d, s2, %d' % (sT0, NREP - 1)); I('s_mul_i32 s%d, s%d, 1536' % (sT0, sT0)); I('s_add_u32 s%d, s%d, %d' % (sPoll, sT0, WS_TOT))
    I('v_min_u32 v%d, 31, v1' % vPoll2); I('v_lshlrev_b32 v%d, 4, v%d' % (vPoll2, vPoll2)); I('v_add_u32 v%d, s%d, v%d' % (vPoll2, sPoll, vPoll2))
    I('v_lshlrev_b32 v%d, 5, v%d' % (vBp, g_))
def w1_addr():
    T = 232
    I('v_lshrrev_b32 v%d, 4, v1' % T); I('v_bfe_u32 v%d, v1, 2, 2' % (T + 1)); I('v_and_b32 v%d, 3, v1' % (T + 2))
    I('v_lshrrev_b32 v%d, 1, v%d' % (T + 3, T)); I('v_lshl_add_u32 v%d, v%d, 3, v%d' % (T + 3, T + 3, T + 1))
    I('v_mul_u32_u24 v%d, 192, v%d' % (T + 3, T + 3))
    I('v_and_b32 v%d, 1, v%d' % (T + 4, T)); I('v_lshl_add_u32 v%d, v%d, 5, v%d' % (T + 3, T + 4, T + 3))
    I('v_lshl_add_u32 v%d, v%d, 3, v%d' % (T + 3, T + 2, T + 3))
    I('s_mul_i32 s%d, s%d, %d' % (sT1, sW, W1S_W)); I('s_add_u32 s%d, s%d, %d' % (sT1, sT1, W1S))
    I('v_add_u32 v%d, s%d, v%d' % (vW1, sT1, T + 3))


def clears():
    T = 240
    I('v_mov_b32 v%d, -1' % (T + 8)); I('v_mov_b32 v%d, -1' % (T + 9)); I('v_mov_b32 v%d, -1' % (T + 10)); I('v_mov_b32 v%d, -1' % (T + 11))
    I('s_mul_i32 s%d, s2, 1536' % sT1); I('s_mul_i32 s%d, s%d, 384' % (sT2, sW)); I('s_add_u32 s%d, s%d, s%d' % (sT1, sT1, sT2))
    I('v_lshlrev_b32 v%d, 4, v1' % (T + 12)); I('v_add_u32 v%d, s%d, v%d' % (T + 12, sT1, T + 12))
    I('s_mov_b32 exec_lo, 0x00ffffff'); I('s_mov_b32 exec_hi, 0')
    I('buffer_store_dwordx4 %s, v%d, %s, 0 offen sc1' % (v(T + 8, 4), T + 12, srd(SWS)), 'clr')
    I('s_cmp_ge_u32 s2, %d' % NREP)
    I('s_cselect_b32 s%d, 2.0, %d' % (sT1, WS_TOT))
    I('buffer_store_dwordx4 %s, v%d, %s, s%d offen sc1' % (v(T + 8, 4), T + 12, srd(SWS), sT1), 'clr')
    execall()

vCf, vCfr = 81, 82
CFLAGS = 163584
def conv():
    I('v_mov_b32 v%d, %d' % (vCfr, CFLAGS))
    I('s_lshl_b32 s%d, s%d, 2' % (sT0, sW)); I('v_add_u32 v%d, s%d, v%d' % (vCf, sT0, vCfr))
    I('v_mov_b32 v%d, 0' % (TS + 4))
    I('s_mov_b64 exec, 1'); I('ds_write_b32 v%d, v%d' % (vCf, TS + 4)); execall()
    A.wait_lg(); barrier()
    A.wait_vm('dw')
    stamp('dw landed', 'p')
    for o in range(3):
        for f in range(4):
            for hlf in range(2):
                I('ds_read_u16 v%d, v%d offset:%d' % (BH + (o * 4 + f) * 2 + hlf, 22 + f * 2 + hlf, 16 * o), 'dwr')
    A.wait_lg('dwr')
    for o in range(3):
        for f in range(4):
            for hlf in range(2):
                src = BH + (o * 4 + f) * 2 + hlf
                I('v_cndmask_b32 v%d, 0, v%d, %s' % (ac(o, f) + 2 * hlf, src, sp(sMc4)))
                I('v_cndmask_b32 v%d, v%d, 0, %s' % (ac(o, f) + 2 * hlf + 1, src, sp(sMc4)))
    stamp('Aconv', 'mpcq')
    sInv, sEps, sAs = 4, 6, 8
    for r, val in ((sInv, 1.0 / 96.0), (sEps, 1e-5), (sAs, AS)):
        I('s_mov_b32 s%d, %s' % (r, hx(f32(val)))); I('s_mov_b32 s%d, %s' % (r + 1, hx(f32(val))))
    def stats(t):
        if OPT['q_nostats']: return
        s0, q0 = TS, TS + 2
        I('v_pk_add_f32 %s, %s, %s' % (v(s0, 2), v(dc(t, 0), 2), v(dc(t, 0) + 2, 2)))
        I('v_pk_mul_f32 %s, %s, %s' % (v(q0, 2), v(dc(t, 0), 2), v(dc(t, 0), 2)))
        rest = [dc(t, 0) + 2, dc(t, 1), dc(t, 1) + 2, dc(t, 2), dc(t, 2) + 2]
        for k, r in enumerate(rest):
            if k > 0: I('v_pk_add_f32 %s, %s, %s' % (v(s0, 2), v(s0, 2), v(r, 2)))
            I('v_pk_fma_f32 %s, %s, %s, %s' % (v(q0, 2), v(r, 2), v(r, 2), v(q0, 2)))
        I('v_add_f32 v%d, v%d, v%d' % (s0, s0, s0 + 1))
        I('v_add_f32 v%d, v%d, v%d' % (q0, q0, q0 + 1))
        I('v_permlane16_swap_b32 v%d, v%d' % (s0, q0))
        I('v_add_f32 v%d, v%d, v%d' % (s0, s0, q0))
    def stats_w(t):
      if not OPT['q_nostats']: I('ds_write_b32 v%d, v%d offset:%d' % (vStW, TS, 2048 * (t >> 1) + 4 * (t & 1)), 'stw')
    def fin_r(P, r):
        for w in range(4): I('ds_read_b128 %s, v%d offset:%d' % (v(r + 4 * w, 4), vStR, 2048 * P + 16 * w), 'st%d' % P)
    def fin(P, r, ts):
        if OPT['q_nofin']: return
        A.wait_lg('st%d' % P)
        for hh in (0, 2):
            I('v_pk_add_f32 %s, %s, %s' % (v(r + hh, 2), v(r + hh, 2), v(r + 4 + hh, 2)))
            I('v_pk_add_f32 %s, %s, %s' % (v(r + 8 + hh, 2), v(r + 8 + hh, 2), v(r + 12 + hh, 2)))
        for hh in (0, 2): I('v_pk_add_f32 %s, %s, %s' % (v(r + hh, 2), v(r + hh, 2), v(r + 8 + hh, 2)))
        I('v_pk_mul_f32 %s, %s, %s' % (v(r, 2), v(r, 2), sp(sInv)))
        I('v_pk_mul_f32 %s, %s, %s' % (v(r + 2, 2), v(r + 2, 2), sp(sInv)))
        I('v_pk_fma_f32 %s, %s, %s, %s neg_lo:[1,0,0] neg_hi:[1,0,0]' % (v(r + 2, 2), v(r, 2), v(r, 2), v(r + 2, 2)))
        I('v_max_f32 v%d, 0, v%d' % (r + 2, r + 2)); I('v_max_f32 v%d, 0, v%d' % (r + 3, r + 3))
        I('v_pk_add_f32 %s, %s, %s' % (v(r + 2, 2), v(r + 2, 2), sp(sEps)))
        I('v_rsq_f32 v%d, v%d' % (r + 2, r + 2)); I('v_rsq_f32 v%d, v%d' % (r + 3, r + 3))
        I('v_pk_mul_f32 %s, %s, %s' % (v(r + 2, 2), v(r + 2, 2), sp(sAs)))
        I('v_pk_mul_f32 %s, %s, %s neg_lo:[1,0] neg_hi:[1,0]' % (v(r, 2), v(r, 2), v(r + 2, 2)))
        for t in ts:
            h = t & 1
            for o in range(3):
                d = dc(t, o)
                for hh in (0, 2):
                    I('v_pk_fma_f32 %s, %s, %s, %s op_sel:[0,%d,%d] op_sel_hi:[1,%d,%d]' % (v(d + hh, 2), v(d + hh, 2), v(r + 2, 2), v(r, 2), h, h, h, h))
                I('v_cvt_pk_bf16_f32 v%d, v%d, v%d' % (d, d, d + 1))
                I('v_cvt_pk_bf16_f32 v%d, v%d, v%d' % (d + 1, d + 2, d + 3))
    def fin_w(ts):
        if OPT['q_nofin']: return
        I('s_mov_b64 exec, %s' % sp(sM14))
        for t in ts:
            for o in range(3):
                I('ds_write_b64 v%d, %s offset:%d' % (vY, v(dc(t, o), 2), YB + 28 * YP * t + 16 * o), 'yw')
        execall()
    def fin_all(ts, rbase):
        for k, t in enumerate(ts): fin(t, rbase + 8 * k)
        for k, t in enumerate(ts): fin_w(t)
    def fin_batch(ts):
        fin(ts[0] >> 1, FN, ts); fin_w(ts)
    def rows_read(s):
        rho = 2 * s
        A.wait_vm('x%d' % (rho + 1))
        stamp('rows<=%d' % (rho + 1), 'c' + ('m' if s in (0, 4, 8) else ''))
        for o in range(3):
            off = rho * XROW + 288 * o
            I('ds_read_b128 %s, v%d offset:%d' % (v(BH + 8 * o, 4), vH, off), 'h%d' % o)
            I('ds_read_b128 %s, v%d offset:%d' % (v(BH + 8 * o + 4, 4), vH, off + XROW), 'h%d' % o)
        if rho >= 4:
            for o in range(3):
                off = (rho - 4) * XROW + 288 * o
                I('ds_read_b128 %s, v%d offset:%d' % (v(BV + 8 * o, 4), vV1, off), 'v%d' % o)
                I('ds_read_b128 %s, v%d offset:%d' % (v(BV + 8 * o + 4, 4), vV2, off), 'v%d' % o)
    def zero(t):
        if t <= 6 and not OPT['q_nozero']:
            for o in range(3):
                I('v_mov_b64 %s, 0' % v(dc(t, o), 2)); I('v_mov_b64 %s, 0' % v(dc(t, o) + 2, 2))
    def dma_x():
        if xrow_next[0] <= 17:
            exec54(); x_dma(1); execall()
    def cflag_set(e):
        I('v_mov_b32 v%d, %d' % (TS + 4, e))
        I('s_mov_b64 exec, 1')
        I('ds_write_b32 v%d, v%d' % (vCf, TS + 4), 'cf')
        execall()
    def cflag_pref(): I('ds_read_b128 %s, v%d' % (v(TS + 4 + 4, 4), vCfr), 'cfr')
    def cflag_wait(e):
        r = TS + 8; lab = 'L_cf%d' % e
        A.wait_lg('cfr')
        def chk():
            I('v_min_u32 v%d, v%d, v%d' % (r, r, r + 1)); I('v_min3_u32 v%d, v%d, v%d, v%d' % (r, r, r + 2, r + 3))
            I('v_cmp_gt_u32 vcc, %d, v%d' % (e, r))
        chk()
        I('s_cbranch_vccz %s_ok' % lab)
        A.label(lab)
        A.raw('ds_read_b128 %s, v%d' % (v(r, 4), vCfr)); A.raw('s_waitcnt lgkmcnt(0)')
        chk()
        I('s_cbranch_vccnz %s' % lab)
        A.label(lab + '_ok')
    zero(0)
    rows_read(0)
    for s in range(9):
        tn = s
        if s in (4, 6): cflag_pref()
        for o in range(3):
            A.wait_lg('h%d' % o)
            for f in range(3):
                t = tn - f
                if 0 <= t <= 6:
                    if not OPT['q_nosmf']: I('v_smfmac_f32_16x16x64_bf16 %s, %s, %s, v%d' % (v(dc(t, o), 4), v(ac(o, f), 4), v(BH + 8 * o, 8), vIDX))
        if s >= 2:
            for o in range(3):
                A.wait_lg('v%d' % o)
                if not OPT['q_nosmf']: I('v_smfmac_f32_16x16x64_bf16 %s, %s, %s, v%d' % (v(dc(tn - 2, o), 4), v(ac(o, 3), 4), v(BV + 8 * o, 8), vIDX))
        if s == 8: break
        fins = {4: (0, 1), 6: (2, 3), 7: (4, 5)}.get(s, ())
        if s == 7:
            w1_dma(0)
            stats(s - 2); stats_w(s - 2)
            w1_dma(1)
            A.wait_lg(); barrier()
            fin_r(fins[0] >> 1, FN)
            w1_dma(2)
            fin_batch(fins)
            rows_read(s + 1)
            continue
        if fins:
            cflag_wait(s - 1)
            fin_r(fins[0] >> 1, FN)
        rows_read(s + 1)
        dma_x()
        zero(s + 1)
        if s >= 2: w1_dma(0)
        if s >= 2: stats(s - 2)
        if s >= 2: w1_dma(1)
        if fins: fin(fins[0] >> 1, FN, fins)
        if s >= 2: stats_w(s - 2)
        if s in (3, 5): cflag_set(s)
        if fins: fin_w(fins)
        if s >= 2: w1_dma(2)
        if s == 0: phaseC_addr()
        if s == 1: w1_addr()
        if s == 3: clears()
    stats(6); stats_w(6)
    A.wait_lg(); barrier()
    stamp('conv done', 'mpc')
    FT = 104
    fin_r(3, FT)
    A.wait_vm()
    for t in range(3):
        for kc in range(6):
            off = kc * 3072 + t * 64
            I('ds_read_b64_tr_b16 %s, v%d offset:%d' % (v(w1f(t, kc), 2), vW1, off), 'w1r')
            I('ds_read_b64_tr_b16 %s, v%d offset:%d' % (v(w1f(t, kc) + 2, 2), vW1, off + 768), 'w1r')
    fin(3, FT, (6,)); fin_w((6,))
    for t in range(3):
        I('v_mov_b64 %s, 0' % v(SQ + 4 * t, 2)); I('v_mov_b64 %s, 0' % v(SQ + 4 * t + 2, 2))
    if OPT['split']:
        I('v_mov_b32 v17, %d' % FLAGS)
        I('s_lshl_b32 s%d, s%d, 2' % (sT0, sW)); I('v_add_u32 v%d, s%d, v17' % (vFl, sT0))
        I('v_mov_b32 v%d, 0' % vFv)
        I('s_mov_b64 exec, 1')
        I('ds_write_b32 v%d, v%d' % (vFl, vFv))
        execall()
    A.wait_lg(); barrier()

def arrive():
    I('s_cmp_lg_u32 s%d, 0' % sW)
    I('s_cbranch_scc1 L_noarrive')
    I('s_and_b32 s%d, s2, 3' % sT0); I('s_lshl_b32 s%d, s%d, 6' % (sT0, sT0))
    I('v_mov_b32 v%d, s%d' % (TT, sT0)); I('v_mov_b32 v%d, 1' % (TT + 1))
    I('s_mov_b64 exec, 1')
    A.raw('buffer_atomic_add v%d, v%d, %s, 0 offen' % (TT + 1, TT, srd(SDBG)))
    execall()
    A.label('L_noarrive')

W2F = 32
def w2f(T2, cl, b): return W2F + ((T2 * 3 + cl) * 2 + b) * 8
CA = 176
def ca(i, T2): return CA + (i * 3 + T2) * 8
CR = CA + 72
XA = 192
def xa(q): return XA + 4 * q
RAW = 172
def raw(cl, T2, b): return RAW + (cl * 6 + T2 * 2 + b) * 4
BF = 250; BACC = 168
sW2M, sW2O, sW2M2, sW2O2 = 10, 11, 12, 13

def yreads(j, base):
    for kc in range(6):
        if j < 6: I('ds_read_b128 %s, v%d offset:%d' % (a_(base + 4 * kc, 4), vYr, YB + j * 32 * YP + 32 * kc), 'y%d' % j)
        else:     I('ds_read_b128 %s, v%d offset:%d' % (a_(base + 4 * kc, 4), vYrem, YB + 32 * kc), 'y%d' % j)
def mfma1(acc, ybase, t, kc):
    c = '0' if kc == 0 else v(acc, 16)
    return 'v_mfma_f32_32x32x16_bf16 %s, %s, %s, %s' % (v(acc, 16), a_(ybase + 4 * kc, 4), v(w1f(t, kc), 4), c)
def mfmar(t, kc):
    c = '0' if kc == 0 else a_(ACCR, 16)
    return 'v_mfma_f32_32x32x16_bf16 %s, %s, %s, %s' % (a_(ACCR, 16), a_(YR + 4 * kc, 4), v(w1f(t, kc), 4), c)

def gelu(srcs, sq, mf, extra, tail, mid=None):
    npair = len(srcs); n = 2 * npair
    for i, s in enumerate(srcs): I('v_pk_fma_f32 %s, %s, %s, %s' % (v(TT + 2 * i, 2), v(s, 2), v(s, 2), sp(sK)))
    for i, s in enumerate(srcs): I('v_pk_mul_f32 %s, %s, %s' % (v(TT + 2 * i, 2), v(s, 2), v(TT + 2 * i, 2)))
    m1, m2 = list(mf[:len(mf) // 2]), list(mf[len(mf) // 2:])
    def trans(op, ms):
        for i in range(n):
            if ms and i % 5 == 0: I(ms.pop(0))
            I('%s v%d, v%d' % (op, TT + i, TT + i))
    trans('v_exp_f32', m1)
    for i in range(npair): I('v_pk_add_f32 %s, %s, 1.0 op_sel_hi:[1,0]' % (v(TT + 2 * i, 2), v(TT + 2 * i, 2)))
    trans('v_rcp_f32', m2)
    assert not m1 and not m2
    if mid: mid()
    for i, s in enumerate(srcs): I('v_pk_mul_f32 %s, %s, %s' % (v(TT + 2 * i, 2), v(s, 2), v(TT + 2 * i, 2)))
    for i in range(npair): I('v_pk_fma_f32 %s, %s, %s, %s' % (v(sq[i], 2), v(TT + 2 * i, 2), v(TT + 2 * i, 2), v(sq[i], 2)))
    extra = list(extra)
    per = max(1, -(-len(extra) // (npair + 1)))
    def ex(n):
        for _ in range(n):
            if extra:
                m = extra.pop(0)
                if callable(m): m()
                else: I(m)
    for i in range(npair):
        if len(extra) > 3 or i % 4 == 0: ex(per if len(extra) > 3 else 1)
        I('v_cvt_pk_bf16_f32 v%d, v%d, v%d' % (PP + i, TT + 2 * i, TT + 2 * i + 1))
    ex(len(extra))
    tail()

def hreads(setidx, sub, Ts):
    for T in Ts:
        for e2 in range(2):
            I('ds_read_b64_tr_b16 %s, v%d offset:%d' % (a_(HM + sub * 48 + T * 4 + 2 * e2, 2), vHR[setidx], T * 4096 + e2 * 1024), 'hr')

vFl, vFv, vFr = 29, 16, 18
def flag_set(e):
    I('v_mov_b32 v%d, %d' % (vFv, e))
    I('s_mov_b64 exec, 1')
    I('ds_write_b32 v%d, v%d' % (vFl, vFv), 'fl')
    execall()
def flag_prefetch():
    I('ds_read_b128 %s, v17' % v(vFr, 4), 'flr')
def flag_wait(e):
    lab = 'L_fw%d' % e
    A.wait_lg('flr')
    I('v_min_u32 v%d, v%d, v%d' % (vFr, vFr, vFr + 1))
    I('v_min3_u32 v%d, v%d, v%d, v%d' % (vFr, vFr, vFr + 2, vFr + 3))
    I('v_cmp_gt_u32 vcc, %d, v%d' % (e, vFr))
    I('s_cbranch_vccz %s_ok' % lab)
    A.label(lab)
    A.raw('ds_read_b128 %s, v17' % v(vFr, 4))
    A.raw('s_waitcnt lgkmcnt(0)')
    I('v_min_u32 v%d, v%d, v%d' % (vFr, vFr, vFr + 1))
    I('v_min3_u32 v%d, v%d, v%d, v%d' % (vFr, vFr, vFr + 2, vFr + 3))
    I('v_cmp_gt_u32 vcc, %d, v%d' % (e, vFr))
    I('s_cbranch_vccnz %s' % lab)
    A.label(lab + '_ok')

def phaseB():
    yreads(0, YA[0])
    A.wait_lg('y0')
    for kc in range(6): I(mfma1(ACC[0], YA[0], 0, kc))
    units = [(j, t) for j in range(6) for t in range(3)]
    xr = [(i, T2) for i in range(3) for T2 in range(3)] + [(3, 0)]
    for u, (j, t) in enumerate(units):
        acc = ACC[u & 1]
        mf = []
        if u + 1 < len(units):
            jn, tn_ = units[u + 1]
            mf = [mfma1(ACC[(u + 1) & 1], YA[jn & 1], tn_, kc) for kc in range(6)]
        extra = []
        if u >= 12 and not OPT['b_noex']:
            rt = (u - 12) // 2; k0 = 3 * ((u - 12) & 1)
            extra = [mfmar(rt, k0 + k) for k in range(3)]
        i = j // 2; jp = j & 1
        if u % 6 == 5:
            cl = u // 6
            bm = [lambda: A.wait_lg('w2r')]
            for T2 in range(3):
                for b in range(2):
                    d = BACC + (T2 * 2 + b) * 4
                    bm.append('v_mfma_f32_16x16x32_bf16 %s, %s, %s, %s' % (a_(d, 4), v(raw(cl, T2, b), 4), v(BF, 4), '0' if cl == 0 else a_(d, 4)))
            extra = extra + bm
        def tail(u=u, j=j, t=t, i=i, jp=jp):
            st = i & 1
            if jp == 0 and t == 0 and i >= 1:
                if OPT['split']: flag_wait(i)
                else:
                    A.wait_lg()
                    if not OPT['b_nobar']: barrier()
            if t == 0 and j < 5 and not OPT['b_noy']: yreads(j + 1, YA[(j + 1) & 1])
            if u == 10: yreads(6, YR)
            if i >= 1 and not OPT['b_nohr']:
                k = 3 * jp + t
                hreads((i - 1) & 1, i - 1, (2 * k, 2 * k + 1))
            if u % 6 == 4:
                A.wait_vm('w2')
                for T2 in range(3):
                    for b in range(2):
                        off = 64 * T2 + 8 * b
                        I('ds_read_b64_tr_b16 %s, v%d offset:%d' % (v(raw(u // 6, T2, b), 2), vW2r, off), 'w2r')
                        I('ds_read_b64_tr_b16 %s, v%d offset:%d' % (v(raw(u // 6, T2, b) + 2, 2), vW2r, off + 8 * 192), 'w2r')
            if not OPT['b_nohw']:
                I('ds_write_b128 v%d, %s offset:%d' % (vHW[jp][0], v(PP, 4), t * 4096 + st * SETSZ), 'hw')
                I('ds_write_b128 v%d, %s offset:%d' % (vHW[jp][1], v(PP + 4, 4), t * 4096 + st * SETSZ), 'hw')
            if OPT['split'] and jp == 1 and t == 2 and i < 2: flag_set(i + 1)
            if OPT['split'] and jp == 1 and t == 2 and i < 2: pass
            cu = u % 6; cl = u // 6
            if cu < 3:
                if cu == 0: I('s_mov_b32 m0, s%d' % sW2M)
                if cu == 2: I('s_mov_b32 m0, s%d' % sW2M2)
                so = sW2O2 if cu == 2 else sW2O
                for k in range(2):
                    I('buffer_load_dwordx4 v%d, %s, s%d offen offset:%d lds' % (vAr, srd(SW2), so, (1024 * k if cu == 2 else 2048 * cu + 1024 * k)), 'w2')
                if cu == 2 and cl < 2:
                    I('s_add_u32 s%d, s%d, %d' % (sW2O, sW2O, W2ST_W)); I('s_add_u32 s%d, s%d, %d' % (sW2O2, sW2O2, W2ST_W))
            if cu == 1:
                I('buffer_load_dwordx2 %s, v%d, %s, 0 offen offset:%d' % (v(BF, 2), vBa, srd(SB), 64 * cl), 'b')
                I('buffer_load_dwordx2 %s, v%d, %s, 0 offen offset:%d' % (v(BF + 2, 2), vBa, srd(SB), 64 * cl + 16), 'b')
            if u == 16: I('buffer_load_dword v%d, v%d, %s, 0 offen sc1' % (vChk, vChkA, srd(SDBG)), 'chk')
            if t == 1 and j < 5: A.wait_lg('y%d' % (j + 1))
            if u == 11: A.wait_lg('y6')
        if u in (14, 16):
            rt = (u - 14) // 2
            pre = ['v_accvgpr_read_b32 v%d, a%d' % (RS + 2 * rt, ACCR), 'v_accvgpr_read_b32 v%d, a%d' % (RS + 2 * rt + 1, ACCR + 1)]
            for p in pre: I(p)
        def tail2(tail=tail, u=u):
            tail()
        gelu([acc + 2 * k for k in range(8)], [SQ + 4 * t + 2 * (k & 1) for k in range(8)], mf, extra, tail, flag_prefetch if (OPT['split'] and u in (6, 12)) else None)
        if u in (2, 5, 8, 11, 14, 17): stamp('unit %d' % u, 'b' + ('m' if u in (5, 17) else ''))
    I('v_accvgpr_read_b32 v%d, a%d' % (RS + 4, ACCR)); I('v_accvgpr_read_b32 v%d, a%d' % (RS + 5, ACCR + 1))
    def rtail():
        for t in range(3): I('ds_write_b32 v%d, v%d offset:%d' % (vRemW, PP + t, REM + 256 * t), 'rw')
    gelu([RS, RS + 2, RS + 4], [SQ, SQ + 4, SQ + 8], [], [], rtail)
    I('s_mul_i32 s%d, s%d, 384' % (sT0, sW)); I('s_add_u32 s%d, s%d, %d' % (sT0, sT0, BIASP))
    I('v_add_u32 v%d, s%d, v%d' % (PP + 4, sT0, vBp))
    I('s_mov_b32 exec_lo, 0x00010001'); I('s_mov_b32 exec_hi, 0x00010001')
    for T2 in range(3):
        for b in range(2): I('ds_write_b128 v%d, %s offset:%d' % (PP + 4, a_(BACC + (T2 * 2 + b) * 4, 4), T2 * 128 + 16 * b), 'bw')
    execall()

def publish():
    for t in range(3):
        s = SQ + 4 * t
        I('v_pk_add_f32 %s, %s, %s' % (v(s, 2), v(s, 2), v(s + 2, 2)))
        I('v_add_f32 v%d, v%d, v%d' % (s, s, s + 1))
    I('v_mov_b32 v%d, v%d' % (SQ + 9, SQ + 8))
    I('v_permlane32_swap_b32 v%d, v%d' % (SQ, SQ + 4))
    I('v_permlane32_swap_b32 v%d, v%d' % (SQ + 8, SQ + 9))
    I('v_add_f32 v%d, v%d, v%d' % (SQ, SQ, SQ + 4))
    I('v_add_f32 v%d, v%d, v%d' % (SQ + 8, SQ + 8, SQ + 9))
    I('v_and_b32 v%d, 0x7fffffff, v%d' % (TT, SQ))
    I('v_and_b32 v%d, 0x7fffffff, v%d' % (TT + 4, SQ + 8))
    I('s_mul_i32 s%d, s2, 1536' % sT0); I('s_mul_i32 s%d, s%d, 384' % (sT1, sW)); I('s_add_u32 s%d, s%d, s%d' % (sT0, sT0, sT1))
    I('v_lshlrev_b32 v%d, 2, v1' % (TT + 8)); I('v_add_u32 v%d, s%d, v%d' % (TT + 8, sT0, TT + 8))
    for b in (TT, TT + 4):
        for k in (1, 2, 3):
            I('v_mov_b32_dpp v%d, v%d quad_perm:[%d,%d,%d,%d] row_mask:0xf bank_mask:0xf' % (b + k, b, k, k, k, k))
    A.wait_vm('chk')
    I('v_cmp_gt_u32 vcc, 64, v%d' % vChk)
    I('s_cbranch_vccz L_chk_done')
    I('s_mov_b32 s%d, %d' % (sCnt, SPIN))
    A.label('L_chk')
    A.raw('buffer_load_dword v%d, v%d, %s, 0 offen sc1' % (vChk, vChkA, srd(SDBG)))
    A.raw('s_waitcnt vmcnt(0)')
    I('v_cmp_gt_u32 vcc, 64, v%d' % vChk)
    I('s_cbranch_vccz L_chk_done')
    I('s_sleep 1')
    I('s_sub_u32 s%d, s%d, 1' % (sCnt, sCnt)); I('s_cmp_lg_u32 s%d, 0' % sCnt)
    I('s_cbranch_scc1 L_chk')
    A.label('L_chk_done')
    I('s_mov_b32 exec_lo, 0x11111111'); I('s_mov_b32 exec_hi, 0x11111111')
    I('buffer_store_dwordx4 %s, v%d, %s, 0 offen sc1' % (v(TT, 4), TT + 8, srd(SWS)), 'pub')
    I('s_mov_b32 exec_hi, 0')
    I('buffer_store_dwordx4 %s, v%d, %s, 0 offen offset:256 sc1' % (v(TT + 4, 4), TT + 8, srd(SWS)), 'pub')
    execall()

def reducer():
    I('s_cmp_ge_u32 s2, %d' % NRED)
    I('s_cbranch_scc1 L_nored')
    B = 32; X = 56
    I('v_lshrrev_b32 v%d, 2, v1' % X); I('v_mul_u32_u24 v%d, 1536, v%d' % (X, X))
    I('v_and_b32 v%d, 3, v1' % (X + 1)); I('v_lshlrev_b32 v%d, 4, v%d' % (X + 1, X + 1))
    I('s_lshl_b32 s%d, s2, 6' % sT1); I('v_add3_u32 v%d, v%d, v%d, s%d' % (X, X, X + 1, sT1))
    I('v_add_u32 v%d, %d, v%d' % (X + 1, WS_TOT, X))
    I('s_mul_i32 s%d, s%d, %d' % (sT0, sW, 64 * 1536)); I('v_add_u32 v%d, s%d, v%d' % (X, sT0, X))
    I('s_lshl_b32 s%d, s%d, 10' % (sT0, sW)); I('s_add_u32 s%d, s%d, %d' % (sT0, sT0, REDB))
    I('v_add_u32 v%d, s%d, v%d' % (X + 4, sT0, vAr))
    I('v_add_u32 v%d, %d, v%d' % (X + 5, REDB, vAr))
    I('s_mov_b32 s%d, %d' % (sT2, 16 * 1536)); I('s_mov_b32 s%d, %d' % (sT3, 32 * 1536)); I('s_mov_b32 s%d, %d' % (sT4, 48 * 1536))
    I('s_mov_b32 s%d, %d' % (sCnt, SPIN))
    A.label('L_red')
    for k, so in enumerate(['0', 's%d' % sT2, 's%d' % sT3, 's%d' % sT4]):
        A.raw('buffer_load_dwordx4 %s, v%d, %s, %s offen sc1' % (v(B + 4 * k, 4), X, srd(SWS), so))
    A.raw('s_waitcnt vmcnt(0)')
    I('v_max3_u32 v%d, v%d, v%d, v%d' % (X + 2, B, B + 1, B + 2))
    I('v_max3_u32 v%d, v%d, v%d, v%d' % (X + 3, B + 3, B + 4, B + 5))
    for k in range(6, 14, 4):
        I('v_max3_u32 v%d, v%d, v%d, v%d' % (X + 2, X + 2, B + k, B + k + 1))
        I('v_max3_u32 v%d, v%d, v%d, v%d' % (X + 3, X + 3, B + k + 2, B + k + 3))
    I('v_max3_u32 v%d, v%d, v%d, v%d' % (X + 2, X + 2, B + 14, B + 15))
    I('v_max_u32 v%d, v%d, v%d' % (X + 2, X + 2, X + 3))
    I('v_cmp_eq_u32 vcc, -1, v%d' % (X + 2))
    I('s_cbranch_vccz L_red_got')
    I('s_sub_u32 s%d, s%d, 1' % (sCnt, sCnt)); I('s_cmp_lg_u32 s%d, 0' % sCnt)
    I('s_cbranch_scc1 L_red')
    A.label('L_red_got')
    stamp('red polled', 'w')
    def tree(n):
        while n > 1:
            n //= 2
            for k in range(n):
                for hh in (0, 2): I('v_pk_add_f32 %s, %s, %s' % (v(B + 4 * k + hh, 2), v(B + 4 * k + hh, 2), v(B + 4 * (k + n) + hh, 2)))
    tree(4)
    I('ds_write_b128 v%d, %s' % (X + 4, v(B, 4)))
    A.wait_lg(); barrier()
    I('s_cmp_lg_u32 s%d, 3' % sW)
    I('s_cbranch_scc1 L_nored')
    for k in range(4): I('ds_read_b128 %s, v%d offset:%d' % (v(B + 4 * k, 4), X + 5, 1024 * k))
    A.wait_lg()
    tree(4)
    for ror in (4, 8):
        for k in range(4): I('v_add_f32_dpp v%d, v%d, v%d row_ror:%d row_mask:0xf bank_mask:0xf' % (B + k, B + k, B + k, ror))
    for sw in ('16', '32'):
        for k in range(4): I('v_mov_b32 v%d, v%d' % (B + 4 + k, B + k))
        for k in range(4): I('v_permlane%s_swap_b32 v%d, v%d' % (sw, B + 4 + k, B + k))
        for k in range(4): I('v_add_f32 v%d, v%d, v%d' % (B + k, B + k, B + 4 + k))
    for k in range(4): I('v_and_b32 v%d, 0x7fffffff, v%d' % (B + k, B + k))
    A.raw('buffer_store_dwordx4 %s, v%d, %s, 0 offen sc1' % (v(B, 4), X + 1, srd(SWS)))
    stamp('red stored', 'w')
    A.label('L_nored')
    I('s_nop 1')

vArRem, vW2sW, vPoll, vSw, vAr2 = 2, 3, 4, 5, 6
vFac_c, vAr_c, vPoll2_c = 7, 8, 9
vTot = 16; vG = 24
def slot(k): return W2F + 8 * k
def wait_compute():
    for i in range(3):
        for T2 in range(3):
            I('buffer_load_dwordx4 %s, v%d, %s, 0 offen offset:%d' % (a_(xa(i * 3 + T2), 4), vOut[i], srd(SX), 64 * T2), 'xr')
    I('buffer_load_dwordx4 %s, v%d, %s, 0 offen' % (a_(xa(9), 4), vOut[3], srd(SX)), 'xr')
    I('v_lshlrev_b32 v6, 3, v1')
    I('buffer_load_dwordx2 v[2:3], v6, %s, 0 offen' % srd(SG), 'g')
    I('buffer_load_dwordx2 v[4:5], v6, %s, 0 offen offset:512' % srd(SG), 'g')
    hreads(0, 2, range(12))
    for T in range(12):
        for e2 in range(2):
            I('ds_read_b64_tr_b16 %s, v%d offset:%d' % (a_(HR + T * 4 + 2 * e2, 2), vRemR, REM + T * 256 + e2 * 64), 'rr')
    def unpack(ri):
        cl, r = divmod(ri, 6); T2, b = divmod(r, 2)
        src = raw(cl, T2, b); d = w2f(T2, cl, b)
        for k in range(4):
            I('v_lshlrev_b32 v%d, 16, v%d' % (d + 2 * k, src + k))
            I('v_and_b32 v%d, 0xffff0000, v%d' % (d + 2 * k + 1, src + k))
    def bt(T2, b): return ca(0, T2) + 4 * b
    tmp = [200 + 4 * k for k in range(12)]
    I('v_add_u32 v%d, %d, v%d' % (vBp, BIASP, vBp))
    def gather_r(half):
        tiles = [(T2, b) for T2 in range(3) for b in range(2)][3 * half:3 * half + 3]
        for q, (T2, b) in enumerate(tiles):
            for w in range(4):
                I('ds_read_b128 %s, v%d offset:%d' % (v(tmp[q * 4 + w], 4), vBp, w * 384 + T2 * 128 + 16 * b), 'bp%d' % q)
        return tiles
    def gather_s(tiles):
        for q, (T2, b) in enumerate(tiles):
            A.wait_lg('bp%d' % q)
            d = bt(T2, b)
            for hh in (0, 2):
                I('v_pk_add_f32 %s, %s, %s' % (v(d + hh, 2), v(tmp[q * 4] + hh, 2), v(tmp[q * 4 + 1] + hh, 2)))
                I('v_pk_add_f32 %s, %s, %s' % (v(tmp[q * 4 + 2] + hh, 2), v(tmp[q * 4 + 2] + hh, 2), v(tmp[q * 4 + 3] + hh, 2)))
                I('v_pk_add_f32 %s, %s, %s' % (v(d + hh, 2), v(d + hh, 2), v(tmp[q * 4 + 2] + hh, 2)))
    unpack(0)
    for ri in range(7, 18): unpack(ri)
    t1 = gather_r(0)
    for ri in range(1, 7): unpack(ri)
    gather_s(t1)
    t2 = gather_r(1)
    I('v_mov_b32 v%d, v%d' % (vFac_c, vFac)); I('v_mov_b32 v%d, v%d' % (vAr_c, vAr)); I('v_mov_b32 v%d, v%d' % (vPoll2_c, vPoll2))
    A.wait_vm('g')
    I('s_mov_b32 s%d, %s' % (sT0, hx(f32(1.0 / AS))))
    for h_ in range(2):
        base = vG + 4 * h_; src = 2 + 2 * h_
        for k in range(2):
            I('v_lshlrev_b32 v%d, 16, v%d' % (base + 2 * k, src + k))
            I('v_and_b32 v%d, 0xffff0000, v%d' % (base + 2 * k + 1, src + k))
        for k in range(4): I('v_mul_f32 v%d, s%d, v%d' % (base + k, sT0, base + k))
    I('s_mul_i32 s%d, s%d, %d' % (sT0, sW, 6 * 1024)); I('v_add_u32 v%d, s%d, v%d' % (vW2sW, sT0, vAr_c))
    I('s_mul_i32 s%d, s%d, %d' % (sT0, sRT, 24 * 1024)); I('v_add_u32 v%d, s%d, v%d' % (vArRem, sT0, vAr_c))
    I('v_add_u32 v%d, 49152, v%d' % (vAr2, vAr_c))
    I('v_add_u32 v%d, s%d, v%d' % (vPoll, sPoll, vAr_c))
    I('v_add_u32 v%d, %d, v%d' % (vSw, SFAC, vAr_c))
    SEL = 16
    I('v_and_b32 v22, 15, v1'); I('v_lshrrev_b32 v23, 4, v1'); I('v_lshrrev_b32 v0, 2, v22')
    I('v_and_b32 v10, 1, v22'); I('v_lshlrev_b32 v10, 4, v10'); I('v_mov_b32 v11, 0x3f80'); I('v_lshlrev_b32 v10, v10, v11')
    I('v_cmp_eq_u32 vcc, v23, v0'); I('v_cndmask_b32 v10, 0, v10, vcc')
    I('v_and_b32 v0, 2, v22'); I('v_cmp_eq_u32 vcc, 0, v0')
    I('v_mov_b32 v%d, 0' % SEL); I('v_mov_b32 v%d, 0' % (SEL + 1)); I('v_mov_b32 v%d, 0' % (SEL + 4)); I('v_mov_b32 v%d, 0' % (SEL + 5))
    I('v_cndmask_b32 v%d, 0, v10, vcc' % (SEL + 2)); I('v_cndmask_b32 v%d, v10, 0, vcc' % (SEL + 3))
    gather_s(t2)
    A.wait_vm('xr')
    def cinit(d, x, cb):
        I('v_mfma_f32_16x16x32_bf16 %s, %s, %s, %s' % (v(d, 4), v(SEL + 2, 4), a_(x, 4), v(cb[0], 4)))
        I('v_mfma_f32_16x16x32_bf16 %s, %s, %s, %s' % (v(d + 4, 4), v(SEL, 4), a_(x, 4), v(cb[1], 4)))
    for i in (1, 2):
        for T2 in range(3): cinit(ca(i, T2), xa(i * 3 + T2), (bt(T2, 0), bt(T2, 1)))
    for T2 in range(3):
        I('s_cmp_lg_u32 s%d, %d' % (sRT, T2))
        I('s_cbranch_scc1 L_rb%d' % T2)
        cinit(CR, xa(9), (bt(T2, 0), bt(T2, 1)))
        A.label('L_rb%d' % T2)
    for T2 in range(3): cinit(ca(0, T2), xa(T2), (bt(T2, 0), bt(T2, 1)))
    A.wait_lg()

def totals():
    X0, X1, X2 = 10, 11, 0
    I('s_cmp_lg_u32 s%d, 0' % sW)
    I('s_cbranch_scc1 L_tot_done')
    I('s_mov_b32 s%d, %d' % (sCnt, SPIN))
    A.label('L_tot')
    A.raw('buffer_load_dwordx4 %s, v%d, %s, 0 offen sc1' % (v(vTot, 4), vPoll, srd(SWS)))
    A.raw('buffer_load_dwordx4 %s, v%d, %s, 0 offen offset:1024 sc1' % (v(vTot + 4, 4), vPoll2_c, srd(SWS)))
    A.raw('s_waitcnt vmcnt(0)')
    I('v_max3_u32 v%d, v%d, v%d, v%d' % (X0, vTot, vTot + 1, vTot + 2))
    I('v_max3_u32 v%d, v%d, v%d, v%d' % (X0, X0, vTot + 3, vTot + 4))
    I('v_max3_u32 v%d, v%d, v%d, v%d' % (X0, X0, vTot + 5, vTot + 6))
    I('v_max_u32 v%d, v%d, v%d' % (X0, X0, vTot + 7))
    I('v_cmp_eq_u32 vcc, -1, v%d' % X0)
    I('s_cbranch_vccz L_tot_got')
    I('s_sub_u32 s%d, s%d, 1' % (sCnt, sCnt)); I('s_cmp_lg_u32 s%d, 0' % sCnt)
    I('s_cbranch_scc1 L_tot')
    A.label('L_tot_got')
    stamp('totals got', 'w')
    I('s_mov_b32 s%d, %s' % (sT0, hx(f32(1.0 / (AS * AS)))))
    I('s_mov_b32 s%d, %s' % (sT1, hx(f32(1e-6))))
    I('v_mov_b32 v%d, s%d' % (X0, sT1))
    for k in range(8): I('v_fma_f32 v%d, v%d, s%d, v%d' % (vTot + k, vTot + k, sT0, X0))
    for k in range(8): I('v_sqrt_f32 v%d, v%d' % (vTot + k, vTot + k))
    I('v_add_f32 v%d, v%d, v%d' % (X1, vTot + 4, vTot + 5)); I('v_add_f32 v%d, v%d, v%d' % (X2, vTot + 6, vTot + 7))
    I('v_add_f32 v%d, v%d, v%d' % (X1, X1, X2))
    I('v_cmp_gt_u32 vcc, 32, v1')
    I('v_cndmask_b32 v%d, 0, v%d, vcc' % (X1, X1))
    I('v_add_f32 v%d, v%d, v%d' % (X2, vTot, vTot + 1)); I('v_add_f32 v%d, v%d, v%d' % (X1, X1, X2))
    I('v_add_f32 v%d, v%d, v%d' % (X2, vTot + 2, vTot + 3)); I('v_add_f32 v%d, v%d, v%d' % (X1, X1, X2))
    for ctl in ('row_shr:1', 'row_shr:2', 'row_shr:4', 'row_shr:8'):
        I('v_add_f32_dpp v%d, v%d, v%d %s row_mask:0xf bank_mask:0xf bound_ctrl:1' % (X1, X1, X1, ctl))
    I('v_add_f32_dpp v%d, v%d, v%d row_bcast:15 row_mask:0xa bank_mask:0xf' % (X1, X1, X1))
    I('v_add_f32_dpp v%d, v%d, v%d row_bcast:31 row_mask:0xc bank_mask:0xf' % (X1, X1, X1))
    I('v_readlane_b32 s%d, v%d, 63' % (sT2, X1))
    I('s_mov_b32 s%d, %s' % (sT0, hx(f32(1.0 / 384.0))))
    I('v_mov_b32 v%d, s%d' % (X1, sT2))
    I('v_fma_f32 v%d, v%d, s%d, v%d' % (X0, X1, sT0, X0))
    I('v_rcp_f32 v%d, v%d' % (X0, X0))
    I('s_mov_b32 s%d, %s' % (sT0, hx(f32(1.0 / AS))))
    I('v_mov_b32 v%d, s%d' % (X1, sT0))
    for k in range(8): I('v_mul_f32 v%d, v%d, v%d' % (vTot + k, vTot + k, X0))
    for k in range(8): I('v_fma_f32 v%d, v%d, v%d, v%d' % (vTot + k, vTot + k, vG + k, X1))
    I('ds_write_b128 v%d, %s' % (vSw, v(vTot, 4)))
    I('s_mov_b32 exec_hi, 0')
    I('ds_write_b128 v%d, %s offset:1024' % (vSw, v(vTot + 4, 4)))
    execall()
    A.wait_lg()
    A.label('L_tot_done')
    barrier()
    stamp('sfac ready', 'mwz')

FAC = [16, 24, 40]
def fac_read(cl):
    I('ds_read_b128 %s, v%d offset:%d' % (v(FAC[cl], 4), vFac_c, cl * 128), 'f%d' % cl)
    I('ds_read_b128 %s, v%d offset:%d' % (v(FAC[cl] + 4, 4), vFac_c, cl * 128 + 32), 'f%d' % cl)
def scale_frag(T2, cl, b, packed):
    r = w2f(T2, cl, b); F = FAC[cl]; out = []
    if packed:
        for k in range(4): out.append((4, 'v_pk_mul_f32 %s, %s, %s' % (v(r + 2 * k, 2), v(r + 2 * k, 2), v(F + 2 * k, 2))))
    else:
        for k in range(8): out.append((4, 'v_mul_f32 v%d, v%d, v%d' % (r + k, r + k, F + k)))
    for k in range(4): out.append((4, 'v_cvt_pk_bf16_f32 v%d, v%d, v%d' % (r + k, r + 2 * k, r + 2 * k + 1)))
    out.append((20, 'ds_write_b128 v%d, %s offset:%d' % (vW2sW, v(r, 4), ((T2 * 12 + cl) * 2 + b) * 1024), 'sw'))
    return out

def scale_first():
    fac_read(0); fac_read(1)
    first = True
    for T2 in range(3):
        for cl in range(3):
            for b in range(2):
                if T2 == 0 and b == 0: A.wait_lg('f%d' % cl)
                for it in scale_frag(T2, cl, b, True): I(it[1], it[2] if len(it) > 2 else None)
                if T2 == 0 and cl == 0 and b == 1: fac_read(2)
    A.wait_lg(); barrier()

def phaseC():
    items = [('d', T2, c) for T2 in (0, 1) for c in range(0, 12, 2)] + [('p', 2, c) for c in range(12)]
    ABd = [48, 64]; ABp = [80, 96, 112, 128]
    def buf(k):
        kind = items[k][0]
        return ABd[k % 2] if kind == 'd' else ABp[k % 4]
    def rd1(reg, F, tag, rem=False):
        lo = F * 1024
        if rem: r = vArRem
        else:
            r = vAr_c
            if lo >= 49152: r = vAr2; lo -= 49152
        I('ds_read_b128 %s, v%d offset:%d' % (v(reg, 4), r, lo), tag)
    def rd(k):
        kind, T2, c = items[k]; b_ = buf(k)
        if kind == 'd':
            for q in range(4): rd1(b_ + 4 * q, (T2 * 12 + c) * 2 + q, 'a%d' % k)
        else:
            for q in range(2): rd1(b_ + 4 * q, (T2 * 12 + c) * 2 + q, 'a%d' % k)
            for q in range(2): rd1(b_ + 8 + 4 * q, c * 2 + q, 'a%d' % k, True)
    fill = []; wq = []
    def epi(regs, addr, off):
        out = [(4, 'v_cvt_pk_bf16_f32 v%d, v%d, v%d' % (regs + k, regs + 2 * k, regs + 2 * k + 1)) for k in range(4)]
        out.append((8, 'buffer_store_dwordx4 %s, v%d, %s, 0 offen offset:%d %s' % (v(regs, 4), addr, srd(SOUT), off, OPT['stf'].replace('_', ' ')), 'st'))
        return out
    def emit_fill(budget):
        while fill and budget > 0:
            it = fill.pop(0)
            if it[1].startswith('ds_write'):
                wq.append(it); continue
            I(it[1], it[2] if len(it) > 2 else None); budget -= it[0]
    def emit_writes():
        while wq:
            it = wq.pop(0); I(it[1], it[2])
    rd(0)
    pending = []
    for k, (kind, T2, c) in enumerate(items):
        ahead = 1 if (kind == 'd' or k + 1 >= len(items)) else 2
        nxt = [k + 1] if kind == 'd' else [k + 2]
        if kind == 'd' and items[k + 1][0] == 'p': nxt = [k + 1, k + 2]
        for n_ in nxt:
            if n_ < len(items): rd(n_)
        emit_writes()
        A.wait_lg('a%d' % k)
        b_ = buf(k)
        ms = []
        if kind == 'd':
            for cc in range(2):
                for i in range(3):
                    for b in range(2):
                        d = ca(i, T2) + 4 * b
                        ms.append('v_mfma_f32_16x16x32_bf16 %s, %s, %s, %s' % (v(d, 4), v(b_ + 8 * cc + 4 * b, 4), a_(HM + i * 48 + (c + cc) * 4, 4), v(d, 4)))
        else:
            for i in range(3):
                for b in range(2):
                    d = ca(i, T2) + 4 * b
                    ms.append('v_mfma_f32_16x16x32_bf16 %s, %s, %s, %s' % (v(d, 4), v(b_ + 4 * b, 4), a_(HM + i * 48 + c * 4, 4), v(d, 4)))
                if i < 2:
                    d = CR + 4 * i
                    ms.append('v_mfma_f32_16x16x32_bf16 %s, %s, %s, %s' % (v(d, 4), v(b_ + 8 + 4 * i, 4), a_(HR + c * 4, 4), v(d, 4)))
        nfill = sum(it[0] for it in fill if not it[1].startswith('ds_write'))
        left = (5 - c // 2) if kind == 'd' else 4
        quota = -(-nfill // max(left, 1))
        per = -(-quota // len(ms))
        for m in ms:
            I(m)
            if quota > 0:
                emit_fill(min(per, 8)); quota -= min(per, 8)
        if (kind == 'd' and c in (4, 10)) or (kind == 'p' and c in (5, 11)): stamp('%s%d.%d' % (kind, T2, c), 'z')
        if kind == 'd' and c == 10:
            pending = [x for i in range(3) for x in epi(ca(i, T2), vOut[i], 64 * T2)]
        elif pending and ((kind == 'd' and c == 0) or (kind == 'p' and c == 0)):
            if not OPT['z_noepi']: fill[0:0] = pending
            pending = []
    assert not fill and not wq
    for i in range(3):
        for it in epi(ca(i, 2), vOut[i], 128): I(it[1], it[2] if len(it) > 2 else None)
    I('s_cmp_eq_u32 s%d, 3' % sW)
    I('s_cbranch_scc1 L_norem')
    for kk in range(4): I('v_cvt_pk_bf16_f32 v%d, v%d, v%d' % (CR + kk, CR + 2 * kk, CR + 2 * kk + 1))
    I('s_mov_b32 exec_lo, 0x000f000f'); I('s_mov_b32 exec_hi, 0x000f000f')
    I('buffer_store_dwordx4 %s, v%d, %s, 0 offen %s' % (v(CR, 4), vOut[3], srd(SOUT), OPT['stf'].replace('_', ' ')), 'st')
    execall()
    A.label('L_norem')

def dump_stamps():
    if not STAMPS: return
    I('s_waitcnt lgkmcnt(0)')
    I('s_lshl_b32 s%d, s2, 2' % sT0); I('s_add_u32 s%d, s%d, s%d' % (sT0, sT0, sW)); I('s_lshl_b32 s%d, s%d, 7' % (sT0, sT0))
    I('s_add_u32 s%d, s%d, %d' % (sT0, sT0, WS_DBG))
    I('v_mov_b32 v12, s%d' % sT0)
    I('s_mov_b64 exec, 1')
    for k in range(nst[0]):
        I('v_mov_b32 v13, s%d' % (sStamp + k))
        I('buffer_store_dword v13, v12, %s, 0 offen offset:%d' % (srd(SWS), 4 * k))
    execall()

def main():
    prologue()
    stamp('prologue end', 'p')
    conv()
    arrive()
    stamp('phaseB start', 'mpcbq')
    phaseB()
    publish()
    stamp('published', 'mbw')
    A.wait_lg(); barrier()
    reducer()
    stamp('reducer', 'w')
    wait_compute()
    stamp('waitwork done', 'mw')
    totals()
    scale_first()
    stamp('scaled', 'mwz')
    phaseC()
    stamp('done', 'mpcbwzq')
    dump_stamps()
    if OPT['dbgt']:
        I('s_waitcnt vmcnt(0)')
        I('s_memtime s[84:85]'); I('s_memrealtime s[86:87]')
        I('s_waitcnt lgkmcnt(0)')
        I('s_sub_u32 s84, s84, s80'); I('s_sub_u32 s86, s86, s82')
        I('s_cmp_lg_u32 s%d, 0' % sW); I('s_cbranch_scc1 L_end')
        I('s_cmp_ge_u32 s2, 6'); I('s_cbranch_scc1 L_end')
        I('s_lshl_b32 s88, s2, 3'); I('s_add_u32 s88, s88, 8')
        I('v_mov_b32 v12, s88'); I('v_mov_b32 v14, s84'); I('v_mov_b32 v15, s86')
        I('s_mov_b64 exec, 1')
        I('buffer_store_dwordx2 v[14:15], v12, %s, 0 offen' % srd(SDBG))
        execall()
    A.label('L_end')
    I('s_endpgm')
    A.label('L_code_end')
    nn = A.fix_hazards()
    hdr = open('cdna_kernels/%s.s.ref' % NAME).read().split('; Override launch')[0]
    s = hdr
    s += "; Override launch geometry by editing the next line (default: block=256,\n"
    s += "; @launch grid=(256,1,1) block=(256,1,1) lds=%d\n" % LDS_BYTES
    s += "; Fused dwconv5x5 + LayerNorm + GEMM + GELU + GRN + GEMM; persistent, one workgroup (14x14 pixels) per CU.\n"
    s += '.amdgcn_target "amdgcn-amd-amdhsa--gfx950"\n.text\n.globl %s_kernel\n.p2align 8\n.type %s_kernel,@function\n%s_kernel:\n' % (NAME, NAME, NAME)
    body = A.text()
    if OPT['pref']: body = body.replace('CODE_LAST', '(L_code_end - L_pc - 4)')
    s += body
    s += '''.section .rodata,"a"
.p2align 6
.amdhsa_kernel %s_kernel
  .amdhsa_next_free_vgpr 512
  .amdhsa_next_free_sgpr 102
  .amdhsa_accum_offset 256
  .amdhsa_group_segment_fixed_size 0
  .amdhsa_kernarg_size 72
  .amdhsa_user_sgpr_count 2
  .amdhsa_user_sgpr_kernarg_segment_ptr 1
  .amdhsa_system_sgpr_workgroup_id_x 1
  .amdhsa_float_denorm_mode_32 3
.end_amdhsa_kernel
''' % NAME
    open(OUT, 'w').write(s)
    if STAMPS: open(OUT + '.names', 'w').write('\n'.join(stamp_names))
    print('instructions', A.count(), 'nops inserted', nn, 'bytes', len(s))
main()
```

```python
import sys, math, struct
from asmlib import Asm

NAME = "standalone__modern_conv_block_slak__vision"
OPT = dict(gv=0, us=8, fs=5, q_noflag=0, q_noyw=0, q_nobar7=0, stf='sc0_sc1', z_nofill=0, z_nobar=0, z_noepi=0, q_nofin=0, q_nostats=0, q_now1=0, q_noset=0, q_nosmf=0, q_nord=0, q_nozero=0, split=1, sg='m', b_nohw=0, b_nohr=0, b_noy=0, b_nobar=0, b_nox=0, b_noex=0, b_st=0, dbgt=0, st_pro=0, debug=0, stamps=0, pref=1, ahead=8, st_conv=0, x_nofin=0, x_nostats=0, x_now1=0, x_nobar=0, x_nosmf=0)
for a in sys.argv[1:]:
    if '=' in a and not a.startswith('out='):
        k, v_ = a.split('='); OPT[k] = int(v_) if v_.lstrip('-').isdigit() else v_
OUT = [a[4:] for a in sys.argv[1:] if a.startswith('out=')]
OUT = OUT[0] if OUT else "cdna_kernels/%s.s" % NAME
DEBUG = OPT['debug']; STAMPS = OPT['stamps']

def f32(x): return struct.unpack('<I', struct.pack('<f', x))[0]
def hx(x): return '0x%08x' % (x & 0xffffffff)

C1 = -2.0 * math.log2(math.e) * math.sqrt(2.0 / math.pi)
C2 = C1 * 0.044715
AS = -((-C2) ** (1.0 / 3.0))
KK = C1 / AS

XROW = 3584
XS = 0
DWS = 18 * XROW;   DWS_W = 1280
W1S = DWS + 4 * DWS_W;   W1S_W = 18432
STATS = W1S + 4 * W1S_W
YB = 0;            YP = 208
RING = 40960;      SETSZ = 49152
REM = 0
W2RAW = 90112;     W2RAW_W = 18432
W2S = 0
FLAGS = 40768
W2ST = 139264; W2ST_W = 6144
SFAC = 73728
BIASP = 4096
REDB = 8192
LDS_BYTES = 163840
assert STATS + 8192 <= LDS_BYTES
WS_PART = 0; WS_TOT = 0x80000; WS_DBG = 0x100000
NREP = 16; NRED = 24
SPIN = 400000

sW = 22
SX, SDW, SW1, SW2, SOUT, SWS, SDBG, SG, SB = 24, 28, 32, 36, 40, 44, 48, 52, 56
sGY0, sGX0 = 60, 61
sT0, sT1, sT2, sT3, sT4, sT5 = 62, 63, 64, 65, 66, 67
sEX = 68
sMc4 = 70; sM14 = 72; sK = 74
sTY, sTX = 76, 77
sCnt = 78; sRT = 79
sPoll = 69
sStamp = 80
sXM, sXO = 23, 3
sW1M, sW1O = 100, 101
def srd(b): return 's[%d:%d]' % (b, b + 3)
def sp(b): return 's[%d:%d]' % (b, b + 1)
def v(b, n=1): return 'v%d' % b if n == 1 else 'v[%d:%d]' % (b, b + n - 1)
def a_(b, n=1): return 'a%d' % b if n == 1 else 'a[%d:%d]' % (b, b + n - 1)

A = Asm(); I = A
nst = [0]; stamp_names = []
LIGHT = [80, 82, 84, 86, 88, 90, 92, 94, 96, 14, 16, 18, 20]
def stamp(name='', grp='m'):
    if STAMPS and any(ch in grp for ch in OPT['sg']):
        k = nst[0]; nst[0] += 1
        stamp_names.append(name)
        if STAMPS == 3:
            I('s_memtime %s' % sp(LIGHT[k]))
            return
        assert k < 16
        A.wait_lg()
        I('%s %s' % ('s_memtime' if STAMPS == 2 else 's_memrealtime', sp(98)))
        I('s_waitcnt lgkmcnt(0)')
        I('s_mov_b32 s%d, s98' % (sStamp + k))
def barrier(): I('s_barrier')

vYr, vYrem = 2, 3
vHW = [[4, 5], [6, 7]]
vHR = [8, 9]
vRemW, vRemR = 10, 11
vOut = [12, 13, 14, 15]
vH, vV1, vV2, vStW, vStR, vY = 16, 17, 18, 19, 20, 21
vW1 = 22
vChk = 30; vChkA = 31
vAr, vFac, vW2r, vBp, vPoll2, vBa = 23, 24, 25, 26, 27, 28
vXo = 240; vW1o = [241, 242, 243]; vPf = 244; vPfD = 245
AC = 32; vIDX = 80; BH = 84; BV = 108; DC = 132; TS = 216; FN = 224
def ac(o, f): return AC + (o * 4 + f) * 4
def dc(t, o): return DC + (t * 3 + o) * 4
W1F = 32
def w1f(t, kc): return W1F + (t * 6 + kc) * 4
ACC = [104, 120]; TT = 136; PP = 152; SQ = 160; RS = 244
YA = [192, 216]; HM = 0; HR = 144; YR = 144; ACCR = 240

def mk(b, p, n):
    I('s_mov_b32 s%d, s%d' % (b, p)); I('s_and_b32 s%d, s%d, 0xffff' % (b + 1, p + 1))
    I('s_mov_b32 s%d, %s' % (b + 2, hx(n))); I('s_mov_b32 s%d, 0x20000' % (b + 3))

xrow_next = [0]
vXo2 = 246
def x_dma(npairs):
    for _ in range(npairs):
        r = xrow_next[0]
        if r > 17: return
        xrow_next[0] += 2
        I('s_mov_b32 m0, s%d' % sXM)
        if r == 0:
            I('s_cmp_lt_i32 s%d, 0' % sXO)
            I('s_cselect_b32 s%d, 2.0, s%d' % (sT3, sXO)); so = sT3
        else: so = sXO
        I('buffer_load_dwordx4 v%d, %s, s%d offen lds' % (vXo, srd(SX), so), 'x%d' % r)
        I('buffer_load_dwordx4 v%d, %s, s%d offen offset:%d lds' % (vXo2, srd(SX), so, XROW), 'x%d' % (r + 1))
        if r < 16:
            I('s_add_u32 s%d, s%d, %d' % (sXM, sXM, 2 * XROW)); I('s_add_u32 s%d, s%d, %d' % (sXO, sXO, 2 * 43008))
def exec54(): I('s_mov_b32 exec_hi, 0x003fffff')
def execall(): I('s_mov_b64 exec, -1')
w1_next = [0]
def w1_dma(c):
    G = w1_next[0]
    if G >= 6 or OPT['q_now1']: return
    if c == 0: I('s_mov_b32 m0, s%d' % sW1M)
    I('buffer_load_dwordx4 v%d, %s, s%d offen offset:%d lds' % (vW1o[c], srd(SW1), sW1O, 1024 * c), 'w1')
    if c == 2:
        w1_next[0] += 1
        if G < 5:
            I('s_add_u32 s%d, s%d, 3072' % (sW1M, sW1M)); I('s_add_u32 s%d, s%d, %d' % (sW1O, sW1O, 16 * 768))

def prologue():
    T = 216
    I('s_cmp_ge_u32 s2, 256')
    I('s_cbranch_scc1 L_end')
    I('s_load_dwordx16 s[4:19], s[0:1], 0')
    I('s_load_dwordx2 s[20:21], s[0:1], 64')
    if OPT['dbgt']:
        I('s_memtime s[80:81]'); I('s_memrealtime s[82:83]')
    if STAMPS:
        I('%s %s' % ('s_memrealtime' if STAMPS == 1 else 's_memtime', sp(80 if STAMPS == 3 else 98)))
        nst[0] += 1; stamp_names.append('start')
    if OPT['pref']:
        I('s_getpc_b64 %s' % sp(sT4))
        A.label('L_pc')
        I('s_lshr_b32 s%d, s2, 3' % sT0); I('s_lshl_b32 s%d, s%d, 10' % (sT0, sT0))
        I('v_lshrrev_b32 v%d, 6, v0' % vPf); I('v_lshlrev_b32 v%d, 8, v%d' % (vPf, vPf))
        I('v_and_b32 v1, 1, v0'); I('v_lshl_add_u32 v%d, v1, 7, v%d' % (vPf, vPf))
        I('v_add_u32 v%d, s%d, v%d' % (vPf, sT0, vPf))
        I('v_min_u32 v%d, CODE_LAST, v%d' % (vPf, vPf))
        I('s_mov_b64 exec, 3')
        I('global_load_dword v%d, v%d, %s' % (vPfD, vPf, sp(sT4)), 'pf')
        execall()
    I('v_and_b32 v1, 63, v0')
    I('v_lshrrev_b32 v%d, 6, v0' % T)
    I('s_and_b32 s%d, s2, 7' % sT0)
    I('s_lshr_b32 s%d, s2, 3' % sT1)
    I('v_readfirstlane_b32 s%d, v%d' % (sW, T))
    I('s_lshr_b32 s%d, s%d, 1' % (sT2, sT0)); I('s_lshl_b32 s%d, s%d, 2' % (sT2, sT2))
    I('s_lshr_b32 s%d, s%d, 3' % (sT3, sT1)); I('s_add_u32 s%d, s%d, s%d' % (sTY, sT2, sT3))
    I('s_and_b32 s%d, s%d, 1' % (sT2, sT0)); I('s_lshl_b32 s%d, s%d, 3' % (sT2, sT2))
    I('s_and_b32 s%d, s%d, 7' % (sT3, sT1)); I('s_add_u32 s%d, s%d, s%d' % (sTX, sT2, sT3))
    I('s_mul_i32 s%d, s%d, 14' % (sGY0, sTY)); I('s_sub_u32 s%d, s%d, 2' % (sGY0, sGY0))
    I('s_mul_i32 s%d, s%d, 14' % (sGX0, sTX)); I('s_sub_u32 s%d, s%d, 2' % (sGX0, sGX0))
    I('v_mul_u32_u24 v%d, 57, v1' % T); I('v_lshrrev_b32 v%d, 10, v%d' % (T, T))
    I('v_mul_u32_u24 v%d, 18, v%d' % (T + 1, T)); I('v_sub_u32 v%d, v1, v%d' % (T + 1, T + 1))
    I('v_add_u32 v%d, s%d, v%d' % (T + 1, sGX0, T + 1))
    I('s_mul_i32 s%d, s%d, 48' % (sT0, sW))
    I('v_mul_i32_i24 v%d, 192, v%d' % (T + 2, T + 1))
    I('v_lshl_add_u32 v%d, v%d, 4, v%d' % (T + 2, T, T + 2))
    I('v_add_u32 v%d, s%d, v%d' % (T + 2, sT0, T + 2))
    I('v_mov_b32 v%d, 0x80000000' % (T + 3))
    I('v_cmp_gt_u32 vcc, 224, v%d' % (T + 1))
    I('v_cndmask_b32 v%d, v%d, v%d, vcc' % (vXo, T + 3, T + 2))
    I('v_add_u32 v%d, %d, v%d' % (vXo2, 43008 - XROW, vXo))
    I('v_mul_u32_u24 v%d, 171, v1' % T); I('v_lshrrev_b32 v%d, 9, v%d' % (T, T))
    I('v_mul_u32_u24 v%d, 3, v%d' % (T + 1, T)); I('v_sub_u32 v%d, v1, v%d' % (T + 1, T + 1))
    I('v_mul_u32_u24 v%d, 192, v%d' % (T, T)); I('v_lshl_add_u32 v%d, v%d, 4, v%d' % (T, T + 1, T))
    I('v_add_u32 v%d, s%d, v%d' % (T + 4, sT0, T))
    I('v_add_u32 v%d, 64, v1' % (T + 1))
    I('v_mul_u32_u24 v%d, 171, v%d' % (T, T + 1)); I('v_lshrrev_b32 v%d, 9, v%d' % (T, T))
    I('v_mul_u32_u24 v%d, 3, v%d' % (T + 2, T)); I('v_sub_u32 v%d, v%d, v%d' % (T + 2, T + 1, T + 2))
    I('v_mul_u32_u24 v%d, 192, v%d' % (T, T)); I('v_lshl_add_u32 v%d, v%d, 4, v%d' % (T, T + 2, T))
    I('v_add_u32 v%d, s%d, v%d' % (T, sT0, T))
    I('v_cmp_gt_u32 vcc, 75, v%d' % (T + 1))
    I('v_cndmask_b32 v%d, v%d, v%d, vcc' % (T + 5, T + 3, T))
    I('s_mul_i32 s%d, s%d, 864' % (sXM, sW))
    I('s_mul_i32 s%d, s%d, 43008' % (sXO, sGY0))
    I('s_mul_i32 s%d, s%d, %d' % (sT1, sW, DWS_W)); I('s_add_u32 s%d, s%d, %d' % (sT1, sT1, DWS))
    I('s_add_u32 s%d, s%d, 1024' % (sT2, sT1))
    I('s_waitcnt lgkmcnt(0)')
    if STAMPS and STAMPS != 3: I('s_mov_b32 s%d, s98' % sStamp)
    mk(SDW, 6, 4800); mk(SX, 4, 9633792)
    I('s_mov_b32 m0, s%d' % sT1)
    I('buffer_load_dwordx4 v%d, %s, 0 offen lds' % (T + 4, srd(SDW)), 'dw')
    I('s_mov_b32 m0, s%d' % sT2)
    I('s_mov_b32 exec_lo, 0xffff'); I('s_mov_b32 exec_hi, 0')
    I('buffer_load_dwordx4 v%d, %s, 0 offen lds' % (T + 5, srd(SDW)), 'dw')
    execall()
    def w1_off():
        for c in range(3):
            I('v_add_u32 v%d, %d, v1' % (T + 8, 64 * c))
            I('v_mul_u32_u24 v%d, 171, v%d' % (T + 9, T + 8)); I('v_lshrrev_b32 v%d, 11, v%d' % (T + 9, T + 9))
            I('v_mul_u32_u24 v%d, 12, v%d' % (T + 10, T + 9)); I('v_sub_u32 v%d, v%d, v%d' % (T + 10, T + 8, T + 10))
            I('v_mul_u32_u24 v%d, 768, v%d' % (T + 9, T + 9))
            I('v_lshl_add_u32 v%d, v%d, 4, v%d' % (vW1o[c], T + 10, T + 9))
            if c: I('v_subrev_u32 v%d, %d, v%d' % (vW1o[c], 1024 * c, vW1o[c]))
        I('s_mul_i32 s%d, s%d, 192' % (sW1O, sW))
        I('s_mul_i32 s%d, s%d, %d' % (sW1M, sW, W1S_W)); I('s_add_u32 s%d, s%d, %d' % (sW1M, sW1M, W1S))
    for p in range(192): assert (p * 171) >> 11 == p // 12
    pend = A.capture(conv_setup) + A.capture(later_setup) + A.capture(w1_off)
    npair = OPT['ahead'] // 2
    per = -(-len(pend) // npair)
    for k in range(npair):
        exec54(); x_dma(1); execall()
        A.emit_items(pend, per)
    assert not pend
    stamp('x issued', 'mp')
    mk(SW1, 8, 73728); mk(SW2, 10, 73728)
    mk(SWS, 20, 0x200000 if (DEBUG or STAMPS) == 0 else 0x8000000)
    if OPT['pref']:
        I('s_lshr_b32 s%d, s2, 3' % sT0); I('s_lshl_b32 s%d, s%d, 2' % (sT0, sT0)); I('s_add_u32 s%d, s%d, s%d' % (sT0, sT0, sW))
        I('s_mul_i32 s%d, s%d, 640' % (sT1, sT0))
        I('v_lshlrev_b32 v%d, 7, v1' % vPf); I('v_add_u32 v%d, s%d, v%d' % (vPf, sT1, vPf))
        I('s_mov_b64 exec, 31')
        I('buffer_load_dword v%d, v%d, %s, 0 offen' % (vPfD, vPf, srd(SW1)), 'pf')
        I('buffer_load_dword v%d, v%d, %s, 0 offen' % (vPfD, vPf, srd(SW2)), 'pf')
        execall()
    mk(SDBG, 18, 256); mk(SOUT, 16, 9633792); mk(SG, 12, 768); mk(SB, 14, 768)

def conv_setup():
    T = 216
    n_, g_, g1, sg = T, T + 1, T + 2, T + 3
    t0, t1, t2 = T + 4, T + 5, T + 6
    I('v_and_b32 v%d, 15, v1' % n_); I('v_lshrrev_b32 v%d, 4, v1' % g_)
    I('v_and_b32 v%d, 1, v%d' % (g1, g_)); I('v_lshrrev_b32 v%d, 1, v%d' % (sg, g_))
    I('s_mul_i32 s%d, s%d, 864' % (sT0, sW))
    I('v_add_u32 v%d, v%d, v%d' % (t0, n_, g_)); I('v_lshlrev_b32 v%d, 4, v%d' % (t0, t0))
    I('v_add_u32 v%d, s%d, v%d' % (vH, sT0, t0))
    I('v_add_u32 v%d, 4, v%d' % (t1, n_)); I('v_lshlrev_b32 v%d, 4, v%d' % (t1, t1)); I('v_add_u32 v%d, s%d, v%d' % (t1, sT0, t1))
    I('v_mul_u32_u24 v%d, %d, v%d' % (t0, XROW, g_)); I('v_add_u32 v%d, v%d, v%d' % (vV1, t0, t1))
    I('v_add_u32 v%d, 4, v%d' % (t0, g1)); I('v_mul_u32_u24 v%d, %d, v%d' % (t0, XROW, t0)); I('v_add_u32 v%d, v%d, v%d' % (vV2, t0, t1))
    I('v_lshl_add_u32 v%d, v%d, 4, v%d' % (t0, sg, n_)); I('v_lshlrev_b32 v%d, 6, v%d' % (t0, t0))
    I('v_add_u32 v%d, %d, v%d' % (vStR, STATS, t0))
    I('s_lshl_b32 s%d, s%d, 4' % (sT1, sW))
    I('v_lshl_add_u32 v%d, v%d, 3, v%d' % (t0, g1, vStR)); I('v_add_u32 v%d, s%d, v%d' % (vStW, sT1, t0))
    I('v_mul_u32_u24 v%d, 14, v%d' % (t0, sg)); I('v_add_u32 v%d, v%d, v%d' % (t0, t0, n_))
    I('v_mul_u32_u24 v%d, %d, v%d' % (t0, YP, t0)); I('v_lshl_add_u32 v%d, v%d, 3, v%d' % (t0, g1, t0))
    I('s_mul_i32 s%d, s%d, 48' % (sT1, sW)); I('v_add_u32 v%d, s%d, v%d' % (vY, sT1, t0))
    I('s_mov_b32 s%d, 0x0f0f0f0f' % sMc4); I('s_mov_b32 s%d, 0x0f0f0f0f' % (sMc4 + 1))
    I('s_mov_b32 s%d, 0x3fff3fff' % sM14); I('s_mov_b32 s%d, 0x3fff3fff' % (sM14 + 1))
    sm, cb, zs, gh = T + 7, T + 8, T + 9, T + 10
    I('v_lshrrev_b32 v%d, 3, v%d' % (sm, n_)); I('v_and_b32 v%d, 7, v%d' % (cb, n_))
    I('s_mul_i32 s%d, s%d, %d' % (sT1, sW, DWS_W)); I('s_add_u32 s%d, s%d, %d' % (sT1, sT1, DWS))
    I('v_lshl_add_u32 v%d, v%d, 1, s%d' % (cb, cb, sT1))
    I('v_add_u32 v%d, %d, v%d' % (zs, 75 * 16, cb))
    I('v_and_b32 v%d, 3, v%d' % (t0, n_)); I('v_mul_u32_u24 v%d, 0x5555, v%d' % (vIDX, t0))
    for f in range(4):
        for hlf in range(2):
            dst = 22 + f * 2 + hlf
            if f < 3:
                I('v_sub_u32 v%d, v%d, v%d' % (t0, sg, sm))
                if f: I('v_add_u32 v%d, %d, v%d' % (t0, 2 * f, t0))
                I('v_mul_i32_i24 v%d, 5, v%d' % (t1, t0))
                I('v_lshl_add_u32 v%d, v%d, 1, v%d' % (t1, g1, t1))
                if hlf: I('v_add_u32 v%d, 1, v%d' % (t1, t1))
            else:
                I('v_lshlrev_b32 v%d, 1, v%d' % (t0, g_)); I('v_sub_u32 v%d, v%d, v%d' % (t0, t0, sm))
                if hlf: I('v_add_u32 v%d, 1, v%d' % (t0, t0))
                I('v_mul_i32_i24 v%d, 5, v%d' % (t1, t0)); I('v_add_u32 v%d, 4, v%d' % (t1, t1))
            I('v_mul_i32_i24 v%d, 48, v%d' % (t1, t1)); I('v_add_u32 v%d, v%d, v%d' % (t1, cb, t1))
            I('v_cmp_gt_u32 vcc, 5, v%d' % t0)
            I('v_cndmask_b32 v%d, v%d, v%d, vcc' % (dst, zs, t1))

def later_setup():
    T = 228
    m_, hf, t0, t1, t2 = T, T + 1, T + 2, T + 3, T + 4
    I('v_and_b32 v%d, 31, v1' % m_); I('v_lshrrev_b32 v%d, 5, v1' % hf)
    I('v_and_b32 v%d, 0x13, v%d' % (t0, m_))
    I('v_and_b32 v%d, 4, v%d' % (t1, m_)); I('v_lshl_or_b32 v%d, v%d, 1, v%d' % (t0, t1, t0))
    I('v_and_b32 v%d, 8, v%d' % (t1, m_)); I('v_lshrrev_b32 v%d, 1, v%d' % (t1, t1)); I('v_or_b32 v%d, v%d, v%d' % (t0, t0, t1))
    I('v_mul_u32_u24 v%d, %d, v%d' % (t0, YP, t0)); I('v_lshl_add_u32 v%d, v%d, 4, v%d' % (vYr, hf, t0))
    I('v_bfe_u32 v%d, v%d, 2, 1' % (t0, m_)); I('v_and_b32 v%d, 1, v%d' % (t1, m_))
    I('v_lshl_add_u32 v%d, v%d, 1, v%d' % (t0, t0, t1)); I('v_add_u32 v%d, 192, v%d' % (t0, t0))
    I('v_mul_u32_u24 v%d, %d, v%d' % (t0, YP, t0)); I('v_lshl_add_u32 v%d, v%d, 4, v%d' % (vYrem, hf, t0))
    I('s_mul_i32 s%d, s%d, %d' % (sT0, sW, 96 * 128)); I('s_add_u32 s%d, s%d, %d' % (sT0, sT0, RING))
    I('v_lshlrev_b32 v%d, 7, v%d' % (t0, m_)); I('v_add_u32 v%d, s%d, v%d' % (t0, sT0, t0))
    I('v_and_b32 v%d, 7, v%d' % (t1, m_)); I('v_xor_b32 v%d, v%d, v%d' % (t1, t1, hf))
    for jp in range(2):
        for s in range(2):
            I('v_xor_b32 v%d, %d, v%d' % (t2, 4 * jp + 2 * s, t1))
            I('v_lshl_add_u32 v%d, v%d, 4, v%d' % (vHW[jp][s], t2, t0))
    I('s_mul_i32 s%d, s%d, %d' % (sT0, sW, 96 * 8))
    I('v_lshlrev_b32 v%d, 3, v%d' % (t0, m_)); I('v_lshl_add_u32 v%d, v%d, 2, v%d' % (t0, hf, t0))
    I('v_add_u32 v%d, s%d, v%d' % (vRemW, sT0, t0))
    g_, rr, cc = T, T + 1, T + 5
    I('v_lshrrev_b32 v%d, 4, v1' % g_); I('v_bfe_u32 v%d, v1, 2, 2' % rr); I('v_and_b32 v%d, 3, v1' % cc)
    I('v_lshrrev_b32 v%d, 1, v%d' % (t0, g_)); I('v_lshlrev_b32 v%d, 4, v%d' % (t0, t0))
    I('v_and_b32 v%d, 1, v%d' % (t1, g_)); I('v_lshl_add_u32 v%d, v%d, 2, v%d' % (t1, t1, rr))
    I('v_add_u32 v%d, v%d, v%d' % (t0, t0, t1))
    I('v_lshlrev_b32 v%d, 3, v%d' % (vRemR, t0))
    I('s_lshl_b32 s%d, s%d, 1' % (sT0, sW))
    I('v_lshrrev_b32 v%d, 1, v%d' % (t2, cc)); I('v_add_u32 v%d, s%d, v%d' % (t2, sT0, t2)); I('v_xor_b32 v%d, v%d, v%d' % (t2, t2, t1))
    I('v_lshlrev_b32 v%d, 7, v%d' % (t0, t0)); I('v_lshl_add_u32 v%d, v%d, 4, v%d' % (t0, t2, t0))
    I('v_and_b32 v%d, 1, v%d' % (t2, cc)); I('v_lshl_add_u32 v%d, v%d, 3, v%d' % (t0, t2, t0))
    I('v_add_u32 v%d, %d, v%d' % (vHR[0], RING, t0)); I('v_add_u32 v%d, %d, v%d' % (vHR[1], RING + SETSZ, t0))
    I('s_mov_b32 s%d, %s' % (sK, hx(f32(KK)))); I('s_mov_b32 s%d, %s' % (sK + 1, hx(f32(KK))))
    n_ = T + 1
    I('v_and_b32 v%d, 15, v1' % n_)
    I('s_mul_i32 s%d, s%d, 14' % (sT2, sTY)); I('s_mul_i32 s%d, s%d, 14' % (sT3, sTX))
    I('s_mul_i32 s%d, s%d, 224' % (sT2, sT2)); I('s_add_u32 s%d, s%d, s%d' % (sT2, sT2, sT3))
    I('s_mul_i32 s%d, s%d, 192' % (sT2, sT2))
    I('s_lshl_b32 s%d, s%d, 4' % (sT3, sW))
    for i in range(4):
        if i < 3:
            I('v_add_u32 v%d, s%d, v%d' % (t0, sT3, n_))
            if i: I('v_add_u32 v%d, %d, v%d' % (t0, 64 * i, t0))
        else:
            I('v_and_b32 v%d, 3, v%d' % (t0, n_)); I('v_add_u32 v%d, 192, v%d' % (t0, t0))
        I('v_mul_u32_u24 v%d, 4682, v%d' % (t1, t0)); I('v_lshrrev_b32 v%d, 16, v%d' % (t1, t1))
        I('v_mul_u32_u24 v%d, 14, v%d' % (t2, t1)); I('v_sub_u32 v%d, v%d, v%d' % (t2, t0, t2))
        I('v_mul_u32_u24 v%d, 224, v%d' % (t1, t1)); I('v_add_u32 v%d, v%d, v%d' % (t1, t1, t2))
        I('v_mul_u32_u24 v%d, 192, v%d' % (t1, t1)); I('v_lshl_add_u32 v%d, v%d, 4, v%d' % (t1, g_, t1))
        I('v_add_u32 v%d, s%d, v%d' % (vOut[i], sT2, t1))
    for p in range(208): assert (p * 4682) >> 16 == p // 14
    I('s_min_u32 s%d, s%d, 2' % (sRT, sW))
    I('s_lshl_b32 s%d, s%d, 6' % (sT5, sRT))
    I('v_add_u32 v%d, s%d, v%d' % (vOut[3], sT5, vOut[3]))
    I('v_and_b32 v%d, 3, v1' % vChkA); I('v_lshlrev_b32 v%d, 6, v%d' % (vChkA, vChkA))

def phaseC_addr():
    T = 232
    g_, ro, ch, t0 = T, T + 1, T + 2, T + 3
    I('v_lshlrev_b32 v%d, 4, v1' % vAr)
    I('v_lshrrev_b32 v%d, 4, v1' % g_)
    I('v_lshrrev_b32 v%d, 1, v%d' % (ro, g_)); I('v_lshlrev_b32 v%d, 4, v%d' % (ro, ro))
    I('v_and_b32 v%d, 1, v%d' % (t0, g_)); I('v_lshl_add_u32 v%d, v%d, 2, v%d' % (ro, t0, ro))
    I('s_mul_i32 s%d, s%d, 96' % (sT3, sW)); I('v_add_u32 v%d, s%d, v%d' % (ch, sT3, ro))
    I('v_lshlrev_b32 v%d, 1, v%d' % (vBa, ch))
    I('v_lshlrev_b32 v%d, 2, v%d' % (vFac, ch)); I('v_add_u32 v%d, %d, v%d' % (vFac, SFAC, vFac))
    I('v_bfe_u32 v%d, v1, 2, 2' % t0); I('v_add_u32 v%d, v%d, v%d' % (ro, ro, t0)); I('v_mul_u32_u24 v%d, 192, v%d' % (ro, ro))
    I('v_and_b32 v%d, 3, v1' % t0); I('v_lshl_add_u32 v%d, v%d, 4, v%d' % (ro, t0, ro))
    I('s_mul_i32 s%d, s%d, %d' % (sT0, sW, W2ST_W)); I('s_add_u32 s%d, s%d, %d' % (sW2M, sT0, W2ST))
    I('v_add_u32 v%d, s%d, v%d' % (vW2r, sW2M, ro))
    I('s_add_u32 s%d, s%d, 4096' % (sW2M2, sW2M))
    I('s_mul_i32 s%d, s%d, %d' % (sW2O, sW, W2RAW_W)); I('s_add_u32 s%d, s%d, 4096' % (sW2O2, sW2O))
    I('s_and_b32 s%d, s2, %d' % (sT0, NREP - 1)); I('s_mul_i32 s%d, s%d, 1536' % (sT0, sT0)); I('s_add_u32 s%d, s%d, %d' % (sPoll, sT0, WS_TOT))
    I('v_min_u32 v%d, 31, v1' % vPoll2); I('v_lshlrev_b32 v%d, 4, v%d' % (vPoll2, vPoll2)); I('v_add_u32 v%d, s%d, v%d' % (vPoll2, sPoll, vPoll2))
    I('v_lshlrev_b32 v%d, 5, v%d' % (vBp, g_))
def w1_addr():
    T = 232
    I('v_lshrrev_b32 v%d, 4, v1' % T); I('v_bfe_u32 v%d, v1, 2, 2' % (T + 1)); I('v_and_b32 v%d, 3, v1' % (T + 2))
    I('v_lshrrev_b32 v%d, 1, v%d' % (T + 3, T)); I('v_lshl_add_u32 v%d, v%d, 3, v%d' % (T + 3, T + 3, T + 1))
    I('v_mul_u32_u24 v%d, 192, v%d' % (T + 3, T + 3))
    I('v_and_b32 v%d, 1, v%d' % (T + 4, T)); I('v_lshl_add_u32 v%d, v%d, 5, v%d' % (T + 3, T + 4, T + 3))
    I('v_lshl_add_u32 v%d, v%d, 3, v%d' % (T + 3, T + 2, T + 3))
    I('s_mul_i32 s%d, s%d, %d' % (sT1, sW, W1S_W)); I('s_add_u32 s%d, s%d, %d' % (sT1, sT1, W1S))
    I('v_add_u32 v%d, s%d, v%d' % (vW1, sT1, T + 3))


def clears():
    T = 240
    I('v_mov_b32 v%d, -1' % (T + 8)); I('v_mov_b32 v%d, -1' % (T + 9)); I('v_mov_b32 v%d, -1' % (T + 10)); I('v_mov_b32 v%d, -1' % (T + 11))
    I('s_mul_i32 s%d, s2, 1536' % sT1); I('s_mul_i32 s%d, s%d, 384' % (sT2, sW)); I('s_add_u32 s%d, s%d, s%d' % (sT1, sT1, sT2))
    I('v_lshlrev_b32 v%d, 4, v1' % (T + 12)); I('v_add_u32 v%d, s%d, v%d' % (T + 12, sT1, T + 12))
    I('s_mov_b32 exec_lo, 0x00ffffff'); I('s_mov_b32 exec_hi, 0')
    I('buffer_store_dwordx4 %s, v%d, %s, 0 offen sc1' % (v(T + 8, 4), T + 12, srd(SWS)), 'clr')
    I('s_cmp_ge_u32 s2, %d' % NREP)
    I('s_cselect_b32 s%d, 2.0, %d' % (sT1, WS_TOT))
    I('buffer_store_dwordx4 %s, v%d, %s, s%d offen sc1' % (v(T + 8, 4), T + 12, srd(SWS), sT1), 'clr')
    execall()

vCf, vCfr = 81, 82
CFLAGS = 163584
def conv():
    I('v_mov_b32 v%d, %d' % (vCfr, CFLAGS))
    I('s_lshl_b32 s%d, s%d, 2' % (sT0, sW)); I('v_add_u32 v%d, s%d, v%d' % (vCf, sT0, vCfr))
    I('v_mov_b32 v%d, 0' % (TS + 4))
    I('s_mov_b64 exec, 1'); I('ds_write_b32 v%d, v%d' % (vCf, TS + 4)); execall()
    A.wait_lg(); barrier()
    A.wait_vm('dw')
    stamp('dw landed', 'p')
    for o in range(3):
        for f in range(4):
            for hlf in range(2):
                I('ds_read_u16 v%d, v%d offset:%d' % (BH + (o * 4 + f) * 2 + hlf, 22 + f * 2 + hlf, 16 * o), 'dwr')
    A.wait_lg('dwr')
    for o in range(3):
        for f in range(4):
            for hlf in range(2):
                src = BH + (o * 4 + f) * 2 + hlf
                I('v_cndmask_b32 v%d, 0, v%d, %s' % (ac(o, f) + 2 * hlf, src, sp(sMc4)))
                I('v_cndmask_b32 v%d, v%d, 0, %s' % (ac(o, f) + 2 * hlf + 1, src, sp(sMc4)))
    stamp('Aconv', 'mpcqr')
    sInv, sEps, sAs = 4, 6, 8
    for r, val in ((sInv, 1.0 / 96.0), (sEps, 1e-5), (sAs, AS)):
        I('s_mov_b32 s%d, %s' % (r, hx(f32(val)))); I('s_mov_b32 s%d, %s' % (r + 1, hx(f32(val))))
    def stats(t):
        if OPT['q_nostats']: return
        s0, q0 = TS, TS + 2
        I('v_pk_add_f32 %s, %s, %s' % (v(s0, 2), v(dc(t, 0), 2), v(dc(t, 0) + 2, 2)))
        I('v_pk_mul_f32 %s, %s, %s' % (v(q0, 2), v(dc(t, 0), 2), v(dc(t, 0), 2)))
        rest = [dc(t, 0) + 2, dc(t, 1), dc(t, 1) + 2, dc(t, 2), dc(t, 2) + 2]
        for k, r in enumerate(rest):
            if k > 0: I('v_pk_add_f32 %s, %s, %s' % (v(s0, 2), v(s0, 2), v(r, 2)))
            I('v_pk_fma_f32 %s, %s, %s, %s' % (v(q0, 2), v(r, 2), v(r, 2), v(q0, 2)))
        I('v_add_f32 v%d, v%d, v%d' % (s0, s0, s0 + 1))
        I('v_add_f32 v%d, v%d, v%d' % (q0, q0, q0 + 1))
        I('v_permlane16_swap_b32 v%d, v%d' % (s0, q0))
        I('v_add_f32 v%d, v%d, v%d' % (s0, s0, q0))
    def stats_w(t):
      if not OPT['q_nostats']: I('ds_write_b32 v%d, v%d offset:%d' % (vStW, TS, 2048 * (t >> 1) + 4 * (t & 1)), 'stw')
    def fin_r(P, r):
        for w in range(4): I('ds_read_b128 %s, v%d offset:%d' % (v(r + 4 * w, 4), vStR, 2048 * P + 16 * w), 'st%d' % P)
    def fin(P, r, ts):
        if OPT['q_nofin']: return
        if not getattr(A, 'lg_nowait', False): A.wait_lg('st%d' % P)
        for hh in (0, 2):
            I('v_pk_add_f32 %s, %s, %s' % (v(r + hh, 2), v(r + hh, 2), v(r + 4 + hh, 2)))
            I('v_pk_add_f32 %s, %s, %s' % (v(r + 8 + hh, 2), v(r + 8 + hh, 2), v(r + 12 + hh, 2)))
        for hh in (0, 2): I('v_pk_add_f32 %s, %s, %s' % (v(r + hh, 2), v(r + hh, 2), v(r + 8 + hh, 2)))
        I('v_pk_mul_f32 %s, %s, %s' % (v(r, 2), v(r, 2), sp(sInv)))
        I('v_pk_mul_f32 %s, %s, %s' % (v(r + 2, 2), v(r + 2, 2), sp(sInv)))
        I('v_pk_fma_f32 %s, %s, %s, %s neg_lo:[1,0,0] neg_hi:[1,0,0]' % (v(r + 2, 2), v(r, 2), v(r, 2), v(r + 2, 2)))
        I('v_max_f32 v%d, 0, v%d' % (r + 2, r + 2)); I('v_max_f32 v%d, 0, v%d' % (r + 3, r + 3))
        I('v_pk_add_f32 %s, %s, %s' % (v(r + 2, 2), v(r + 2, 2), sp(sEps)))
        I('v_rsq_f32 v%d, v%d' % (r + 2, r + 2)); I('v_rsq_f32 v%d, v%d' % (r + 3, r + 3))
        I('v_pk_mul_f32 %s, %s, %s' % (v(r + 2, 2), v(r + 2, 2), sp(sAs)))
        I('v_pk_mul_f32 %s, %s, %s neg_lo:[1,0] neg_hi:[1,0]' % (v(r, 2), v(r, 2), v(r + 2, 2)))
        for t in ts:
            h = t & 1
            for o in range(3):
                d = dc(t, o)
                for hh in (0, 2):
                    I('v_pk_fma_f32 %s, %s, %s, %s op_sel:[0,%d,%d] op_sel_hi:[1,%d,%d]' % (v(d + hh, 2), v(d + hh, 2), v(r + 2, 2), v(r, 2), h, h, h, h))
                I('v_cvt_pk_bf16_f32 v%d, v%d, v%d' % (d, d, d + 1))
                I('v_cvt_pk_bf16_f32 v%d, v%d, v%d' % (d + 1, d + 2, d + 3))
    def fin_w(ts):
        if OPT['q_nofin']: return
        I('s_mov_b64 exec, %s' % sp(sM14))
        for t in ts:
            for o in range(3):
                if not OPT['q_noyw']: I('ds_write_b64 v%d, %s offset:%d' % (vY, v(dc(t, o), 2), YB + 28 * YP * t + 16 * o), 'yw')
        execall()
    def fin_all(ts, rbase):
        for k, t in enumerate(ts): fin(t, rbase + 8 * k)
        for k, t in enumerate(ts): fin_w(t)
    def fin_batch(ts):
        fin(ts[0] >> 1, FN, ts); fin_w(ts)
    def rows_read(s):
        rho = 2 * s
        A.wait_vm('x%d' % (rho + 1))
        stamp('rows<=%d' % (rho + 1), 'c' + ('m' if s in (0, 4, 8) else '') + ('r' if s in (4, 8) else ''))
        for o in range(3):
            off = rho * XROW + 288 * o
            I('ds_read_b128 %s, v%d offset:%d' % (v(BH + 8 * o, 4), vH, off), 'h%d' % o)
            I('ds_read_b128 %s, v%d offset:%d' % (v(BH + 8 * o + 4, 4), vH, off + XROW), 'h%d' % o)
        if rho >= 4:
            for o in range(3):
                off = (rho - 4) * XROW + 288 * o
                I('ds_read_b128 %s, v%d offset:%d' % (v(BV + 8 * o, 4), vV1, off), 'v%d' % o)
                I('ds_read_b128 %s, v%d offset:%d' % (v(BV + 8 * o + 4, 4), vV2, off), 'v%d' % o)
    def zero(t):
        if t <= 6 and not OPT['q_nozero']:
            for o in range(3):
                I('v_mov_b64 %s, 0' % v(dc(t, o), 2)); I('v_mov_b64 %s, 0' % v(dc(t, o) + 2, 2))
    def dma_x():
        if xrow_next[0] <= 17:
            exec54(); x_dma(1); execall()
    def cflag_set(e):
        I('v_mov_b32 v%d, %d' % (TS + 4, e))
        I('s_mov_b64 exec, 1')
        I('ds_write_b32 v%d, v%d' % (vCf, TS + 4), 'cf')
        execall()
    def cflag_pref(): I('ds_read_b128 %s, v%d' % (v(TS + 4 + 4, 4), vCfr), 'cfr')
    def cflag_wait(e):
        r = TS + 8; lab = 'L_cf%d' % e
        A.wait_lg('cfr')
        def chk():
            I('v_min_u32 v%d, v%d, v%d' % (r, r, r + 1)); I('v_min3_u32 v%d, v%d, v%d, v%d' % (r, r, r + 2, r + 3))
            I('v_cmp_gt_u32 vcc, %d, v%d' % (e, r))
        chk()
        I('s_cbranch_vccz %s_ok' % lab)
        A.label(lab)
        A.raw('ds_read_b128 %s, v%d' % (v(r, 4), vCfr)); A.raw('s_waitcnt lgkmcnt(0)')
        chk()
        I('s_cbranch_vccnz %s' % lab)
        A.label(lab + '_ok')
    zero(0)
    rows_read(0)
    finA = {4: 0, 6: 1}
    finB = {5: (0, 1), 7: (2, 3)}
    for s in range(9):
        tn = s
        fst = lambda n, s_=s: stamp(n, 'f') if s_ == OPT['fs'] else None
        if s == OPT['fs'] + 1: stamp('next step', 'f')
        fst('step start')
        for o in range(3):
            A.wait_lg('h%d' % o)
            for f in range(3):
                t = tn - f
                if 0 <= t <= 6:
                    if not OPT['q_nosmf']: I('v_smfmac_f32_16x16x64_bf16 %s, %s, %s, v%d' % (v(dc(t, o), 4), v(ac(o, f), 4), v(BH + 8 * o, 8), vIDX))
        if s >= 2:
            for o in range(3):
                A.wait_lg('v%d' % o)
                if not OPT['q_nosmf']: I('v_smfmac_f32_16x16x64_bf16 %s, %s, %s, v%d' % (v(dc(tn - 2, o), 4), v(ac(o, 3), 4), v(BV + 8 * o, 8), vIDX))
        fst('smfmac issued')
        if s == 8: break
        if s < 7: rows_read(s + 1)
        fst('reads issued')
        dma_x()
        zero(s + 1)
        if s >= 1: w1_dma(0)
        fst('zero+dma0')
        if s in finB: fin(finB[s][0] >> 1, FN, finB[s])
        fst('fin')
        if s >= 2: stats(s - 2)
        fst('stats')
        if s in finA: cflag_pref()
        if s >= 1: w1_dma(1)
        if s >= 2: stats_w(s - 2)
        if s in (3, 5, 7): cflag_set(s)
        if s in finB: fin_w(finB[s])
        fst('writes')
        if s >= 1: w1_dma(2)
        if s == 0: phaseC_addr()
        if s == 1: w1_addr()
        if s == 3: clears()
        if s in finA:
            cflag_wait(s - 1)
            fin_r(finA[s], FN)
        if s == 7: rows_read(8)
        fst('end')
    stamp('smf8', 't')
    w1q = []
    for t in range(3):
        for kc in range(6):
            off = kc * 3072 + t * 64
            w1q.append('ds_read_b64_tr_b16 %s, v%d offset:%d' % (v(w1f(t, kc), 2), vW1, off))
            w1q.append('ds_read_b64_tr_b16 %s, v%d offset:%d' % (v(w1f(t, kc) + 2, 2), vW1, off + 768))
    def w1r(n):
        for _ in range(min(n, len(w1q))): I(w1q.pop(0), 'w1r')
    def inter(fn, every, n):
        items = A.capture(fn)
        while items:
            A.emit_items(items, every); w1r(n)
    cflag_pref(); cflag_wait(7)
    fin_r(2, FN)
    A.wait_vm('w1')
    stamp('flag+finr', 't')
    inter(lambda: stats(6), 6, 3)
    stats_w(6)
    stamp('stats6', 't')
    A.wait_lg('st2')
    A.lg_nowait = True
    inter(lambda: fin(2, FN, (4, 5)), 8, 4)
    A.lg_nowait = False
    fin_w((4, 5))
    stamp('finP2', 't')
    A.wait_lg(); barrier()
    stamp('conv done', 'mpcr')
    stamp('bar', 't')
    FT = 104
    fin_r(3, FT)
    w1r(36)
    A.wait_vm()
    stamp('w1 reads', 't')
    fin(3, FT, (6,)); fin_w((6,))
    stamp('fin6', 't')
    for t in range(3):
        I('v_mov_b64 %s, 0' % v(SQ + 4 * t, 2)); I('v_mov_b64 %s, 0' % v(SQ + 4 * t + 2, 2))
    if OPT['split']:
        I('v_mov_b32 v17, %d' % FLAGS)
        I('s_lshl_b32 s%d, s%d, 2' % (sT0, sW)); I('v_add_u32 v%d, s%d, v17' % (vFl, sT0))
        I('v_mov_b32 v%d, 0' % vFv)
        I('s_mov_b64 exec, 1')
        I('ds_write_b32 v%d, v%d' % (vFl, vFv))
        execall()
    A.wait_lg(); barrier()

def arrive():
    I('s_cmp_lg_u32 s%d, 0' % sW)
    I('s_cbranch_scc1 L_noarrive')
    I('s_and_b32 s%d, s2, 3' % sT0); I('s_lshl_b32 s%d, s%d, 6' % (sT0, sT0))
    I('v_mov_b32 v254, s%d' % sT0); I('v_mov_b32 v255, 1')
    I('s_mov_b64 exec, 1')
    A.raw('buffer_atomic_add v255, v254, %s, 0 offen' % srd(SDBG))
    execall()
    A.label('L_noarrive')

W2F = 32
def w2f(T2, cl, b): return W2F + ((T2 * 3 + cl) * 2 + b) * 8
CA = 176
def ca(i, T2): return CA + (i * 3 + T2) * 8
CR = CA + 72
XA = 192
def xa(q): return XA + 4 * q
RAW = 172
def raw(cl, T2, b): return RAW + (cl * 6 + T2 * 2 + b) * 4
BF = 250; BACC = 168
sW2M, sW2O, sW2M2, sW2O2 = 10, 11, 12, 13

def yreads(j, base):
    for kc in range(6):
        if j < 6: I('ds_read_b128 %s, v%d offset:%d' % (a_(base + 4 * kc, 4), vYr, YB + j * 32 * YP + 32 * kc), 'y%d' % j)
        else:     I('ds_read_b128 %s, v%d offset:%d' % (a_(base + 4 * kc, 4), vYrem, YB + 32 * kc), 'y%d' % j)
def mfma1(acc, ybase, t, kc):
    c = '0' if kc == 0 else v(acc, 16)
    return 'v_mfma_f32_32x32x16_bf16 %s, %s, %s, %s' % (v(acc, 16), a_(ybase + 4 * kc, 4), v(w1f(t, kc), 4), c)
def mfmar(t, kc):
    c = '0' if kc == 0 else a_(ACCR, 16)
    return 'v_mfma_f32_32x32x16_bf16 %s, %s, %s, %s' % (a_(ACCR, 16), a_(YR + 4 * kc, 4), v(w1f(t, kc), 4), c)

def gelu(srcs, sq, mf, extra, tail, mid=None, st=lambda n: None):
    st('u start')
    npair = len(srcs); n = 2 * npair
    for i, s in enumerate(srcs): I('v_pk_fma_f32 %s, %s, %s, %s' % (v(TT + 2 * i, 2), v(s, 2), v(s, 2), sp(sK)))
    for i, s in enumerate(srcs): I('v_pk_mul_f32 %s, %s, %s' % (v(TT + 2 * i, 2), v(s, 2), v(TT + 2 * i, 2)))
    m1, m2 = list(mf[:len(mf) // 2]), list(mf[len(mf) // 2:])
    def trans(op, ms):
        for i in range(n):
            if ms and i % 5 == 0: I(ms.pop(0))
            I('%s v%d, v%d' % (op, TT + i, TT + i))
    st('S12')
    trans('v_exp_f32', m1)
    st('S3')
    for i in range(npair): I('v_pk_add_f32 %s, %s, 1.0 op_sel_hi:[1,0]' % (v(TT + 2 * i, 2), v(TT + 2 * i, 2)))
    st('S4')
    trans('v_rcp_f32', m2)
    st('S5')
    assert not m1 and not m2
    if mid: mid()
    gv = OPT['gv']
    mul = lambda i: I('v_pk_mul_f32 %s, %s, %s' % (v(TT + 2 * i, 2), v(srcs[i], 2), v(TT + 2 * i, 2)))
    acc = lambda i: I('v_pk_fma_f32 %s, %s, %s, %s' % (v(sq[i], 2), v(TT + 2 * i, 2), v(TT + 2 * i, 2), v(sq[i], 2)))
    if gv == 0 or npair < 8:
        for i in range(npair): mul(i)
        for i in range(npair): acc(i)
    elif gv == 1:
        for i in range(npair + 3):
            if i < npair: mul(i)
            if i >= 3: acc(i - 3)
    elif gv == 2:
        for i in range(npair): mul(i)
    st('S67')
    extra = list(extra)
    per = max(1, -(-len(extra) // (npair + 1)))
    def ex(n):
        for _ in range(n):
            if extra:
                m = extra.pop(0)
                if callable(m): m()
                else: I(m)
    for i in range(npair):
        if len(extra) > 3 or i % 4 == 0: ex(per if len(extra) > 3 else 1)
        I('v_cvt_pk_bf16_f32 v%d, v%d, v%d' % (PP + i, TT + 2 * i, TT + 2 * i + 1))
    ex(len(extra))
    st('S8')
    tail()
    st('tail')

def hreads(setidx, sub, Ts):
    for T in Ts:
        for e2 in range(2):
            I('ds_read_b64_tr_b16 %s, v%d offset:%d' % (a_(HM + sub * 48 + T * 4 + 2 * e2, 2), vHR[setidx], T * 4096 + e2 * 1024), 'hr')

vFl, vFv, vFr = 29, 16, 18
def flag_set(e):
    I('v_mov_b32 v%d, %d' % (vFv, e))
    I('s_mov_b64 exec, 1')
    I('ds_write_b32 v%d, v%d' % (vFl, vFv), 'fl')
    execall()
def flag_prefetch():
    I('ds_read_b128 %s, v17' % v(vFr, 4), 'flr')
def flag_wait(e):
    lab = 'L_fw%d' % e
    A.wait_lg('flr')
    I('v_min_u32 v%d, v%d, v%d' % (vFr, vFr, vFr + 1))
    I('v_min3_u32 v%d, v%d, v%d, v%d' % (vFr, vFr, vFr + 2, vFr + 3))
    I('v_cmp_gt_u32 vcc, %d, v%d' % (e, vFr))
    I('s_cbranch_vccz %s_ok' % lab)
    A.label(lab)
    A.raw('ds_read_b128 %s, v17' % v(vFr, 4))
    A.raw('s_waitcnt lgkmcnt(0)')
    I('v_min_u32 v%d, v%d, v%d' % (vFr, vFr, vFr + 1))
    I('v_min3_u32 v%d, v%d, v%d, v%d' % (vFr, vFr, vFr + 2, vFr + 3))
    I('v_cmp_gt_u32 vcc, %d, v%d' % (e, vFr))
    I('s_cbranch_vccnz %s' % lab)
    A.label(lab + '_ok')

def phaseB():
    yreads(0, YA[0])
    A.wait_lg('y0')
    for kc in range(6): I(mfma1(ACC[0], YA[0], 0, kc))
    stamp('first mfma', 't')
    units = [(j, t) for j in range(6) for t in range(3)]
    xr = [(i, T2) for i in range(3) for T2 in range(3)] + [(3, 0)]
    for u, (j, t) in enumerate(units):
        acc = ACC[u & 1]
        mf = []
        if u + 1 < len(units):
            jn, tn_ = units[u + 1]
            mf = [mfma1(ACC[(u + 1) & 1], YA[jn & 1], tn_, kc) for kc in range(6)]
        extra = []
        if u >= 12 and not OPT['b_noex']:
            rt = (u - 12) // 2; k0 = 3 * ((u - 12) & 1)
            extra = [mfmar(rt, k0 + k) for k in range(3)]
        i = j // 2; jp = j & 1
        if u % 6 == 5:
            cl = u // 6
            bm = [lambda: A.wait_lg('w2r')]
            for T2 in range(3):
                for b in range(2):
                    d = BACC + (T2 * 2 + b) * 4
                    bm.append('v_mfma_f32_16x16x32_bf16 %s, %s, %s, %s' % (a_(d, 4), v(raw(cl, T2, b), 4), v(BF, 4), '0' if cl == 0 else a_(d, 4)))
            extra = extra + bm
        def tail(u=u, j=j, t=t, i=i, jp=jp):
            st = i & 1
            if jp == 0 and t == 0 and i >= 1:
                if OPT['split']: flag_wait(i)
                else:
                    A.wait_lg()
                    if not OPT['b_nobar']: barrier()
            if t == 0 and j < 5 and not OPT['b_noy']: yreads(j + 1, YA[(j + 1) & 1])
            if u == 10: yreads(6, YR)
            if i >= 1 and not OPT['b_nohr']:
                k = 3 * jp + t
                hreads((i - 1) & 1, i - 1, (2 * k, 2 * k + 1))
            if u % 6 == 4:
                A.wait_vm('w2')
                for T2 in range(3):
                    for b in range(2):
                        off = 64 * T2 + 8 * b
                        I('ds_read_b64_tr_b16 %s, v%d offset:%d' % (v(raw(u // 6, T2, b), 2), vW2r, off), 'w2r')
                        I('ds_read_b64_tr_b16 %s, v%d offset:%d' % (v(raw(u // 6, T2, b) + 2, 2), vW2r, off + 8 * 192), 'w2r')
            if not OPT['b_nohw']:
                I('ds_write_b128 v%d, %s offset:%d' % (vHW[jp][0], v(PP, 4), t * 4096 + st * SETSZ), 'hw')
                I('ds_write_b128 v%d, %s offset:%d' % (vHW[jp][1], v(PP + 4, 4), t * 4096 + st * SETSZ), 'hw')
            if OPT['split'] and jp == 1 and t == 2 and i < 2: flag_set(i + 1)
            if OPT['split'] and jp == 1 and t == 2 and i < 2: pass
            if u == 1: arrive()
            cu = u % 6; cl = u // 6
            if cu < 3:
                if cu == 0: I('s_mov_b32 m0, s%d' % sW2M)
                if cu == 2: I('s_mov_b32 m0, s%d' % sW2M2)
                so = sW2O2 if cu == 2 else sW2O
                for k in range(2):
                    I('buffer_load_dwordx4 v%d, %s, s%d offen offset:%d lds' % (vAr, srd(SW2), so, (1024 * k if cu == 2 else 2048 * cu + 1024 * k)), 'w2')
                if cu == 2 and cl < 2:
                    I('s_add_u32 s%d, s%d, %d' % (sW2O, sW2O, W2ST_W)); I('s_add_u32 s%d, s%d, %d' % (sW2O2, sW2O2, W2ST_W))
            if cu == 1:
                I('buffer_load_dwordx2 %s, v%d, %s, 0 offen offset:%d' % (v(BF, 2), vBa, srd(SB), 64 * cl), 'b')
                I('buffer_load_dwordx2 %s, v%d, %s, 0 offen offset:%d' % (v(BF + 2, 2), vBa, srd(SB), 64 * cl + 16), 'b')
            if u == 16: I('buffer_load_dword v%d, v%d, %s, 0 offen sc1' % (vChk, vChkA, srd(SDBG)), 'chk')
            if t == 1 and j < 5: A.wait_lg('y%d' % (j + 1))
            if u == 11: A.wait_lg('y6')
        if u in (14, 16):
            rt = (u - 14) // 2
            pre = ['v_accvgpr_read_b32 v%d, a%d' % (RS + 2 * rt, ACCR), 'v_accvgpr_read_b32 v%d, a%d' % (RS + 2 * rt + 1, ACCR + 1)]
            for p in pre: I(p)
        def tail2(tail=tail, u=u):
            tail()
        gelu([acc + 2 * k for k in range(8)], [SQ + 4 * t + 2 * (k & 1) for k in range(8)], mf, extra, tail, flag_prefetch if (OPT['split'] and u in (6, 12)) else None, (lambda n: stamp(n, 'u')) if u == OPT['us'] else (lambda n: None))
        if u in (2, 5, 8, 11, 14, 17): stamp('unit %d' % u, 'b' + ('m' if u in (5, 17) else ''))
        if u == 0: stamp('unit 0', 't')
        if u <= 8: stamp('u%d' % u, 'v')
        if u >= 8: stamp('u%d' % u, 'x')
    I('v_accvgpr_read_b32 v%d, a%d' % (RS + 4, ACCR)); I('v_accvgpr_read_b32 v%d, a%d' % (RS + 5, ACCR + 1))
    def rtail():
        for t in range(3): I('ds_write_b32 v%d, v%d offset:%d' % (vRemW, PP + t, REM + 256 * t), 'rw')
    gelu([RS, RS + 2, RS + 4], [SQ, SQ + 4, SQ + 8], [], [], rtail)

def publish():
    for t in range(3):
        s = SQ + 4 * t
        I('v_pk_add_f32 %s, %s, %s' % (v(s, 2), v(s, 2), v(s + 2, 2)))
        I('v_add_f32 v%d, v%d, v%d' % (s, s, s + 1))
    I('v_mov_b32 v%d, v%d' % (SQ + 9, SQ + 8))
    I('v_permlane32_swap_b32 v%d, v%d' % (SQ, SQ + 4))
    I('v_permlane32_swap_b32 v%d, v%d' % (SQ + 8, SQ + 9))
    I('v_add_f32 v%d, v%d, v%d' % (SQ, SQ, SQ + 4))
    I('v_add_f32 v%d, v%d, v%d' % (SQ + 8, SQ + 8, SQ + 9))
    I('v_and_b32 v%d, 0x7fffffff, v%d' % (TT, SQ))
    I('v_and_b32 v%d, 0x7fffffff, v%d' % (TT + 4, SQ + 8))
    I('s_mul_i32 s%d, s2, 1536' % sT0); I('s_mul_i32 s%d, s%d, 384' % (sT1, sW)); I('s_add_u32 s%d, s%d, s%d' % (sT0, sT0, sT1))
    I('v_lshlrev_b32 v%d, 2, v1' % (TT + 8)); I('v_add_u32 v%d, s%d, v%d' % (TT + 8, sT0, TT + 8))
    for b in (TT, TT + 4):
        for k in (1, 2, 3):
            I('v_mov_b32_dpp v%d, v%d quad_perm:[%d,%d,%d,%d] row_mask:0xf bank_mask:0xf' % (b + k, b, k, k, k, k))
    A.wait_vm('chk')
    I('v_cmp_gt_u32 vcc, 64, v%d' % vChk)
    I('s_cbranch_vccz L_chk_done')
    I('s_mov_b32 s%d, %d' % (sCnt, SPIN))
    A.label('L_chk')
    A.raw('buffer_load_dword v%d, v%d, %s, 0 offen sc1' % (vChk, vChkA, srd(SDBG)))
    A.raw('s_waitcnt vmcnt(0)')
    I('v_cmp_gt_u32 vcc, 64, v%d' % vChk)
    I('s_cbranch_vccz L_chk_done')
    I('s_sleep 1')
    I('s_sub_u32 s%d, s%d, 1' % (sCnt, sCnt)); I('s_cmp_lg_u32 s%d, 0' % sCnt)
    I('s_cbranch_scc1 L_chk')
    A.label('L_chk_done')
    I('s_mov_b32 exec_lo, 0x11111111'); I('s_mov_b32 exec_hi, 0x11111111')
    I('buffer_store_dwordx4 %s, v%d, %s, 0 offen sc1' % (v(TT, 4), TT + 8, srd(SWS)), 'pub')
    I('s_mov_b32 exec_hi, 0')
    I('buffer_store_dwordx4 %s, v%d, %s, 0 offen offset:256 sc1' % (v(TT + 4, 4), TT + 8, srd(SWS)), 'pub')
    execall()

def bias_write():
    I('s_mul_i32 s%d, s%d, 384' % (sT0, sW)); I('s_add_u32 s%d, s%d, %d' % (sT0, sT0, BIASP))
    I('v_add_u32 v%d, s%d, v%d' % (PP + 4, sT0, vBp))
    I('s_mov_b32 exec_lo, 0x00010001'); I('s_mov_b32 exec_hi, 0x00010001')
    for T2 in range(3):
        for b in range(2): I('ds_write_b128 v%d, %s offset:%d' % (PP + 4, a_(BACC + (T2 * 2 + b) * 4, 4), T2 * 128 + 16 * b), 'bw')
    execall()

def reducer():
    I('s_cmp_ge_u32 s2, %d' % NRED)
    I('s_cbranch_scc1 L_nored')
    B = 32; X = 56
    I('v_lshrrev_b32 v%d, 2, v1' % X); I('v_mul_u32_u24 v%d, 1536, v%d' % (X, X))
    I('v_and_b32 v%d, 3, v1' % (X + 1)); I('v_lshlrev_b32 v%d, 4, v%d' % (X + 1, X + 1))
    I('s_lshl_b32 s%d, s2, 6' % sT1); I('v_add3_u32 v%d, v%d, v%d, s%d' % (X, X, X + 1, sT1))
    I('v_add_u32 v%d, %d, v%d' % (X + 1, WS_TOT, X))
    I('s_mul_i32 s%d, s%d, %d' % (sT0, sW, 64 * 1536)); I('v_add_u32 v%d, s%d, v%d' % (X, sT0, X))
    I('s_lshl_b32 s%d, s%d, 10' % (sT0, sW)); I('s_add_u32 s%d, s%d, %d' % (sT0, sT0, REDB))
    I('v_add_u32 v%d, s%d, v%d' % (X + 4, sT0, vAr))
    I('v_add_u32 v%d, %d, v%d' % (X + 5, REDB, vAr))
    I('s_mov_b32 s%d, %d' % (sT2, 16 * 1536)); I('s_mov_b32 s%d, %d' % (sT3, 32 * 1536)); I('s_mov_b32 s%d, %d' % (sT4, 48 * 1536))
    I('s_mov_b32 s%d, %d' % (sCnt, SPIN))
    A.label('L_red')
    for k, so in enumerate(['0', 's%d' % sT2, 's%d' % sT3, 's%d' % sT4]):
        A.raw('buffer_load_dwordx4 %s, v%d, %s, %s offen sc1' % (v(B + 4 * k, 4), X, srd(SWS), so))
    A.raw('s_waitcnt vmcnt(0)')
    I('v_max3_u32 v%d, v%d, v%d, v%d' % (X + 2, B, B + 1, B + 2))
    I('v_max3_u32 v%d, v%d, v%d, v%d' % (X + 3, B + 3, B + 4, B + 5))
    for k in range(6, 14, 4):
        I('v_max3_u32 v%d, v%d, v%d, v%d' % (X + 2, X + 2, B + k, B + k + 1))
        I('v_max3_u32 v%d, v%d, v%d, v%d' % (X + 3, X + 3, B + k + 2, B + k + 3))
    I('v_max3_u32 v%d, v%d, v%d, v%d' % (X + 2, X + 2, B + 14, B + 15))
    I('v_max_u32 v%d, v%d, v%d' % (X + 2, X + 2, X + 3))
    I('v_cmp_eq_u32 vcc, -1, v%d' % (X + 2))
    I('s_cbranch_vccz L_red_got')
    I('s_sub_u32 s%d, s%d, 1' % (sCnt, sCnt)); I('s_cmp_lg_u32 s%d, 0' % sCnt)
    I('s_cbranch_scc1 L_red')
    A.label('L_red_got')
    stamp('red polled', 'w')
    def tree(n):
        while n > 1:
            n //= 2
            for k in range(n):
                for hh in (0, 2): I('v_pk_add_f32 %s, %s, %s' % (v(B + 4 * k + hh, 2), v(B + 4 * k + hh, 2), v(B + 4 * (k + n) + hh, 2)))
    tree(4)
    I('ds_write_b128 v%d, %s' % (X + 4, v(B, 4)))
    A.wait_lg(); barrier()
    I('s_cmp_lg_u32 s%d, 3' % sW)
    I('s_cbranch_scc1 L_nored')
    for k in range(4): I('ds_read_b128 %s, v%d offset:%d' % (v(B + 4 * k, 4), X + 5, 1024 * k))
    A.wait_lg()
    tree(4)
    for ror in (4, 8):
        for k in range(4): I('v_add_f32_dpp v%d, v%d, v%d row_ror:%d row_mask:0xf bank_mask:0xf' % (B + k, B + k, B + k, ror))
    for sw in ('16', '32'):
        for k in range(4): I('v_mov_b32 v%d, v%d' % (B + 4 + k, B + k))
        for k in range(4): I('v_permlane%s_swap_b32 v%d, v%d' % (sw, B + 4 + k, B + k))
        for k in range(4): I('v_add_f32 v%d, v%d, v%d' % (B + k, B + k, B + 4 + k))
    for k in range(4): I('v_and_b32 v%d, 0x7fffffff, v%d' % (B + k, B + k))
    A.raw('buffer_store_dwordx4 %s, v%d, %s, 0 offen sc1' % (v(B, 4), X + 1, srd(SWS)))
    stamp('red stored', 'w')
    A.label('L_nored')
    I('s_nop 1')

vArRem, vW2sW, vPoll, vSw, vAr2 = 2, 3, 4, 5, 6
vFac_c, vAr_c, vPoll2_c = 7, 8, 9
vTot = 16; vG = 24
def slot(k): return W2F + 8 * k
def wait_compute():
    for i in range(3):
        for T2 in range(3):
            I('buffer_load_dwordx4 %s, v%d, %s, 0 offen offset:%d' % (a_(xa(i * 3 + T2), 4), vOut[i], srd(SX), 64 * T2), 'xr')
    I('buffer_load_dwordx4 %s, v%d, %s, 0 offen' % (a_(xa(9), 4), vOut[3], srd(SX)), 'xr')
    I('v_lshlrev_b32 v6, 3, v1')
    I('buffer_load_dwordx2 v[2:3], v6, %s, 0 offen' % srd(SG), 'g')
    I('buffer_load_dwordx2 v[4:5], v6, %s, 0 offen offset:512' % srd(SG), 'g')
    hreads(0, 2, range(12))
    for T in range(12):
        for e2 in range(2):
            I('ds_read_b64_tr_b16 %s, v%d offset:%d' % (a_(HR + T * 4 + 2 * e2, 2), vRemR, REM + T * 256 + e2 * 64), 'rr')
    def unpack(ri):
        cl, r = divmod(ri, 6); T2, b = divmod(r, 2)
        src = raw(cl, T2, b); d = w2f(T2, cl, b)
        for k in range(4):
            I('v_lshlrev_b32 v%d, 16, v%d' % (d + 2 * k, src + k))
            I('v_and_b32 v%d, 0xffff0000, v%d' % (d + 2 * k + 1, src + k))
    def bt(T2, b): return ca(0, T2) + 4 * b
    tmp = [200 + 4 * k for k in range(12)]
    I('v_add_u32 v%d, %d, v%d' % (vBp, BIASP, vBp))
    def gather_r(half):
        tiles = [(T2, b) for T2 in range(3) for b in range(2)][3 * half:3 * half + 3]
        for q, (T2, b) in enumerate(tiles):
            for w in range(4):
                I('ds_read_b128 %s, v%d offset:%d' % (v(tmp[q * 4 + w], 4), vBp, w * 384 + T2 * 128 + 16 * b), 'bp%d' % q)
        return tiles
    def gather_s(tiles):
        for q, (T2, b) in enumerate(tiles):
            A.wait_lg('bp%d' % q)
            d = bt(T2, b)
            for hh in (0, 2):
                I('v_pk_add_f32 %s, %s, %s' % (v(d + hh, 2), v(tmp[q * 4] + hh, 2), v(tmp[q * 4 + 1] + hh, 2)))
                I('v_pk_add_f32 %s, %s, %s' % (v(tmp[q * 4 + 2] + hh, 2), v(tmp[q * 4 + 2] + hh, 2), v(tmp[q * 4 + 3] + hh, 2)))
                I('v_pk_add_f32 %s, %s, %s' % (v(d + hh, 2), v(d + hh, 2), v(tmp[q * 4 + 2] + hh, 2)))
    unpack(0)
    for ri in range(7, 18): unpack(ri)
    t1 = gather_r(0)
    for ri in range(1, 7): unpack(ri)
    gather_s(t1)
    t2 = gather_r(1)
    I('v_mov_b32 v%d, v%d' % (vFac_c, vFac)); I('v_mov_b32 v%d, v%d' % (vAr_c, vAr)); I('v_mov_b32 v%d, v%d' % (vPoll2_c, vPoll2))
    A.wait_vm('g')
    I('s_mov_b32 s%d, %s' % (sT0, hx(f32(1.0 / AS))))
    for h_ in range(2):
        base = vG + 4 * h_; src = 2 + 2 * h_
        for k in range(2):
            I('v_lshlrev_b32 v%d, 16, v%d' % (base + 2 * k, src + k))
            I('v_and_b32 v%d, 0xffff0000, v%d' % (base + 2 * k + 1, src + k))
        for k in range(4): I('v_mul_f32 v%d, s%d, v%d' % (base + k, sT0, base + k))
    I('s_mul_i32 s%d, s%d, %d' % (sT0, sW, 6 * 1024)); I('v_add_u32 v%d, s%d, v%d' % (vW2sW, sT0, vAr_c))
    I('s_mul_i32 s%d, s%d, %d' % (sT0, sRT, 24 * 1024)); I('v_add_u32 v%d, s%d, v%d' % (vArRem, sT0, vAr_c))
    I('v_add_u32 v%d, 49152, v%d' % (vAr2, vAr_c))
    I('v_add_u32 v%d, s%d, v%d' % (vPoll, sPoll, vAr_c))
    I('v_add_u32 v%d, %d, v%d' % (vSw, SFAC, vAr_c))
    SEL = 16
    I('v_and_b32 v22, 15, v1'); I('v_lshrrev_b32 v23, 4, v1'); I('v_lshrrev_b32 v0, 2, v22')
    I('v_and_b32 v10, 1, v22'); I('v_lshlrev_b32 v10, 4, v10'); I('v_mov_b32 v11, 0x3f80'); I('v_lshlrev_b32 v10, v10, v11')
    I('v_cmp_eq_u32 vcc, v23, v0'); I('v_cndmask_b32 v10, 0, v10, vcc')
    I('v_and_b32 v0, 2, v22'); I('v_cmp_eq_u32 vcc, 0, v0')
    I('v_mov_b32 v%d, 0' % SEL); I('v_mov_b32 v%d, 0' % (SEL + 1)); I('v_mov_b32 v%d, 0' % (SEL + 4)); I('v_mov_b32 v%d, 0' % (SEL + 5))
    I('v_cndmask_b32 v%d, 0, v10, vcc' % (SEL + 2)); I('v_cndmask_b32 v%d, v10, 0, vcc' % (SEL + 3))
    gather_s(t2)
    A.wait_vm('xr')
    def cinit(d, x, cb):
        I('v_mfma_f32_16x16x32_bf16 %s, %s, %s, %s' % (v(d, 4), v(SEL + 2, 4), a_(x, 4), v(cb[0], 4)))
        I('v_mfma_f32_16x16x32_bf16 %s, %s, %s, %s' % (v(d + 4, 4), v(SEL, 4), a_(x, 4), v(cb[1], 4)))
    for i in (1, 2):
        for T2 in range(3): cinit(ca(i, T2), xa(i * 3 + T2), (bt(T2, 0), bt(T2, 1)))
    for T2 in range(3):
        I('s_cmp_lg_u32 s%d, %d' % (sRT, T2))
        I('s_cbranch_scc1 L_rb%d' % T2)
        cinit(CR, xa(9), (bt(T2, 0), bt(T2, 1)))
        A.label('L_rb%d' % T2)
    for T2 in range(3): cinit(ca(0, T2), xa(T2), (bt(T2, 0), bt(T2, 1)))
    A.wait_lg()

def totals():
    X0, X1, X2 = 10, 11, 0
    I('s_cmp_lg_u32 s%d, 0' % sW)
    I('s_cbranch_scc1 L_tot_done')
    I('s_mov_b32 s%d, %d' % (sCnt, SPIN))
    A.label('L_tot')
    A.raw('buffer_load_dwordx4 %s, v%d, %s, 0 offen sc1' % (v(vTot, 4), vPoll, srd(SWS)))
    A.raw('buffer_load_dwordx4 %s, v%d, %s, 0 offen offset:1024 sc1' % (v(vTot + 4, 4), vPoll2_c, srd(SWS)))
    A.raw('s_waitcnt vmcnt(0)')
    I('v_max3_u32 v%d, v%d, v%d, v%d' % (X0, vTot, vTot + 1, vTot + 2))
    I('v_max3_u32 v%d, v%d, v%d, v%d' % (X0, X0, vTot + 3, vTot + 4))
    I('v_max3_u32 v%d, v%d, v%d, v%d' % (X0, X0, vTot + 5, vTot + 6))
    I('v_max_u32 v%d, v%d, v%d' % (X0, X0, vTot + 7))
    I('v_cmp_eq_u32 vcc, -1, v%d' % X0)
    I('s_cbranch_vccz L_tot_got')
    I('s_sub_u32 s%d, s%d, 1' % (sCnt, sCnt)); I('s_cmp_lg_u32 s%d, 0' % sCnt)
    I('s_cbranch_scc1 L_tot')
    A.label('L_tot_got')
    stamp('totals got', 'w')
    I('s_mov_b32 s%d, %s' % (sT0, hx(f32(1.0 / (AS * AS)))))
    I('s_mov_b32 s%d, %s' % (sT1, hx(f32(1e-6))))
    I('v_mov_b32 v%d, s%d' % (X0, sT1))
    for k in range(8): I('v_fma_f32 v%d, v%d, s%d, v%d' % (vTot + k, vTot + k, sT0, X0))
    for k in range(8): I('v_sqrt_f32 v%d, v%d' % (vTot + k, vTot + k))
    I('v_add_f32 v%d, v%d, v%d' % (X1, vTot + 4, vTot + 5)); I('v_add_f32 v%d, v%d, v%d' % (X2, vTot + 6, vTot + 7))
    I('v_add_f32 v%d, v%d, v%d' % (X1, X1, X2))
    I('v_cmp_gt_u32 vcc, 32, v1')
    I('v_cndmask_b32 v%d, 0, v%d, vcc' % (X1, X1))
    I('v_add_f32 v%d, v%d, v%d' % (X2, vTot, vTot + 1)); I('v_add_f32 v%d, v%d, v%d' % (X1, X1, X2))
    I('v_add_f32 v%d, v%d, v%d' % (X2, vTot + 2, vTot + 3)); I('v_add_f32 v%d, v%d, v%d' % (X1, X1, X2))
    for ctl in ('row_shr:1', 'row_shr:2', 'row_shr:4', 'row_shr:8'):
        I('v_add_f32_dpp v%d, v%d, v%d %s row_mask:0xf bank_mask:0xf bound_ctrl:1' % (X1, X1, X1, ctl))
    I('v_add_f32_dpp v%d, v%d, v%d row_bcast:15 row_mask:0xa bank_mask:0xf' % (X1, X1, X1))
    I('v_add_f32_dpp v%d, v%d, v%d row_bcast:31 row_mask:0xc bank_mask:0xf' % (X1, X1, X1))
    I('v_readlane_b32 s%d, v%d, 63' % (sT2, X1))
    I('s_mov_b32 s%d, %s' % (sT0, hx(f32(1.0 / 384.0))))
    I('v_mov_b32 v%d, s%d' % (X1, sT2))
    I('v_fma_f32 v%d, v%d, s%d, v%d' % (X0, X1, sT0, X0))
    I('v_rcp_f32 v%d, v%d' % (X0, X0))
    I('s_mov_b32 s%d, %s' % (sT0, hx(f32(1.0 / AS))))
    I('v_mov_b32 v%d, s%d' % (X1, sT0))
    for k in range(8): I('v_mul_f32 v%d, v%d, v%d' % (vTot + k, vTot + k, X0))
    for k in range(8): I('v_fma_f32 v%d, v%d, v%d, v%d' % (vTot + k, vTot + k, vG + k, X1))
    I('ds_write_b128 v%d, %s' % (vSw, v(vTot, 4)))
    I('s_mov_b32 exec_hi, 0')
    I('ds_write_b128 v%d, %s offset:1024' % (vSw, v(vTot + 4, 4)))
    execall()
    A.wait_lg()
    A.label('L_tot_done')
    barrier()
    stamp('sfac ready', 'mwz')

FAC = [16, 24, 40]
def fac_read(cl):
    I('ds_read_b128 %s, v%d offset:%d' % (v(FAC[cl], 4), vFac_c, cl * 128), 'f%d' % cl)
    I('ds_read_b128 %s, v%d offset:%d' % (v(FAC[cl] + 4, 4), vFac_c, cl * 128 + 32), 'f%d' % cl)
def scale_frag(T2, cl, b, packed):
    r = w2f(T2, cl, b); F = FAC[cl]; out = []
    if packed:
        for k in range(4): out.append((4, 'v_pk_mul_f32 %s, %s, %s' % (v(r + 2 * k, 2), v(r + 2 * k, 2), v(F + 2 * k, 2))))
    else:
        for k in range(8): out.append((4, 'v_mul_f32 v%d, v%d, v%d' % (r + k, r + k, F + k)))
    for k in range(4): out.append((4, 'v_cvt_pk_bf16_f32 v%d, v%d, v%d' % (r + k, r + 2 * k, r + 2 * k + 1)))
    out.append((20, 'ds_write_b128 v%d, %s offset:%d' % (vW2sW, v(r, 4), ((T2 * 12 + cl) * 2 + b) * 1024), 'sw'))
    return out

def scale_first():
    fac_read(0); fac_read(1)
    first = True
    for T2 in range(3):
        for cl in range(3):
            for b in range(2):
                if T2 == 0 and b == 0: A.wait_lg('f%d' % cl)
                for it in scale_frag(T2, cl, b, True): I(it[1], it[2] if len(it) > 2 else None)
                if T2 == 0 and cl == 0 and b == 1: fac_read(2)
    A.wait_lg(); barrier()

def phaseC():
    items = [('d', T2, c) for T2 in (0, 1) for c in range(0, 12, 2)] + [('p', 2, c) for c in range(12)]
    ABd = [48, 64]; ABp = [80, 96, 112, 128]
    def buf(k):
        kind = items[k][0]
        return ABd[k % 2] if kind == 'd' else ABp[k % 4]
    def rd1(reg, F, tag, rem=False):
        lo = F * 1024
        if rem: r = vArRem
        else:
            r = vAr_c
            if lo >= 49152: r = vAr2; lo -= 49152
        I('ds_read_b128 %s, v%d offset:%d' % (v(reg, 4), r, lo), tag)
    def rd(k):
        kind, T2, c = items[k]; b_ = buf(k)
        if kind == 'd':
            for q in range(4): rd1(b_ + 4 * q, (T2 * 12 + c) * 2 + q, 'a%d' % k)
        else:
            for q in range(2): rd1(b_ + 4 * q, (T2 * 12 + c) * 2 + q, 'a%d' % k)
            for q in range(2): rd1(b_ + 8 + 4 * q, c * 2 + q, 'a%d' % k, True)
    fill = []; wq = []
    def epi(regs, addr, off):
        out = [(4, 'v_cvt_pk_bf16_f32 v%d, v%d, v%d' % (regs + k, regs + 2 * k, regs + 2 * k + 1)) for k in range(4)]
        out.append((8, 'buffer_store_dwordx4 %s, v%d, %s, 0 offen offset:%d %s' % (v(regs, 4), addr, srd(SOUT), off, OPT['stf'].replace('_', ' ')), 'st'))
        return out
    def emit_fill(budget):
        while fill and budget > 0:
            it = fill.pop(0)
            if it[1].startswith('ds_write'):
                wq.append(it); continue
            I(it[1], it[2] if len(it) > 2 else None); budget -= it[0]
    def emit_writes():
        while wq:
            it = wq.pop(0); I(it[1], it[2])
    rd(0)
    pending = []
    for k, (kind, T2, c) in enumerate(items):
        ahead = 1 if (kind == 'd' or k + 1 >= len(items)) else 2
        nxt = [k + 1] if kind == 'd' else [k + 2]
        if kind == 'd' and items[k + 1][0] == 'p': nxt = [k + 1, k + 2]
        for n_ in nxt:
            if n_ < len(items): rd(n_)
        emit_writes()
        A.wait_lg('a%d' % k)
        b_ = buf(k)
        ms = []
        if kind == 'd':
            for cc in range(2):
                for i in range(3):
                    for b in range(2):
                        d = ca(i, T2) + 4 * b
                        ms.append('v_mfma_f32_16x16x32_bf16 %s, %s, %s, %s' % (v(d, 4), v(b_ + 8 * cc + 4 * b, 4), a_(HM + i * 48 + (c + cc) * 4, 4), v(d, 4)))
        else:
            for i in range(3):
                for b in range(2):
                    d = ca(i, T2) + 4 * b
                    ms.append('v_mfma_f32_16x16x32_bf16 %s, %s, %s, %s' % (v(d, 4), v(b_ + 4 * b, 4), a_(HM + i * 48 + c * 4, 4), v(d, 4)))
                if i < 2:
                    d = CR + 4 * i
                    ms.append('v_mfma_f32_16x16x32_bf16 %s, %s, %s, %s' % (v(d, 4), v(b_ + 8 + 4 * i, 4), a_(HR + c * 4, 4), v(d, 4)))
        nfill = sum(it[0] for it in fill if not it[1].startswith('ds_write'))
        left = (5 - c // 2) if kind == 'd' else 4
        quota = -(-nfill // max(left, 1))
        per = -(-quota // len(ms))
        for m in ms:
            I(m)
            if quota > 0:
                emit_fill(min(per, 8)); quota -= min(per, 8)
        if (kind == 'd' and c in (4, 10)) or (kind == 'p' and c in (5, 11)): stamp('%s%d.%d' % (kind, T2, c), 'z')
        if kind == 'd' and c == 10:
            pending = [x for i in range(3) for x in epi(ca(i, T2), vOut[i], 64 * T2)]
        elif pending and ((kind == 'd' and c == 0) or (kind == 'p' and c == 0)):
            if not OPT['z_noepi']: fill[0:0] = pending
            pending = []
    assert not fill and not wq
    for i in range(3):
        for it in epi(ca(i, 2), vOut[i], 128): I(it[1], it[2] if len(it) > 2 else None)
    I('s_cmp_eq_u32 s%d, 3' % sW)
    I('s_cbranch_scc1 L_norem')
    for kk in range(4): I('v_cvt_pk_bf16_f32 v%d, v%d, v%d' % (CR + kk, CR + 2 * kk, CR + 2 * kk + 1))
    I('s_mov_b32 exec_lo, 0x000f000f'); I('s_mov_b32 exec_hi, 0x000f000f')
    I('buffer_store_dwordx4 %s, v%d, %s, 0 offen %s' % (v(CR, 4), vOut[3], srd(SOUT), OPT['stf'].replace('_', ' ')), 'st')
    execall()
    A.label('L_norem')

def dump_stamps():
    if not STAMPS: return
    I('s_waitcnt lgkmcnt(0)')
    I('s_lshl_b32 s%d, s2, 2' % sT0); I('s_add_u32 s%d, s%d, s%d' % (sT0, sT0, sW)); I('s_lshl_b32 s%d, s%d, 7' % (sT0, sT0))
    I('s_add_u32 s%d, s%d, %d' % (sT0, sT0, WS_DBG))
    I('v_mov_b32 v12, s%d' % sT0)
    I('s_mov_b64 exec, 1')
    for k in range(nst[0]):
        I('v_mov_b32 v13, s%d' % (LIGHT[k] if STAMPS == 3 else sStamp + k))
        I('buffer_store_dword v13, v12, %s, 0 offen offset:%d' % (srd(SWS), 4 * k))
    execall()

def main():
    prologue()
    stamp('prologue end', 'p')
    conv()
    stamp('bar2', 't')
    stamp('phaseB start', 'mpcbqrtv')
    phaseB()
    publish()
    stamp('published', 'mbwx')
    bias_write()
    A.wait_lg(); barrier()
    reducer()
    stamp('reducer', 'w')
    wait_compute()
    stamp('waitwork done', 'mw')
    totals()
    scale_first()
    stamp('scaled', 'mwz')
    phaseC()
    stamp('done', 'mpcbwzqr')
    dump_stamps()
    if OPT['dbgt']:
        I('s_waitcnt vmcnt(0)')
        I('s_memtime s[84:85]'); I('s_memrealtime s[86:87]')
        I('s_waitcnt lgkmcnt(0)')
        I('s_sub_u32 s84, s84, s80'); I('s_sub_u32 s86, s86, s82')
        I('s_cmp_lg_u32 s%d, 0' % sW); I('s_cbranch_scc1 L_end')
        I('s_cmp_ge_u32 s2, 6'); I('s_cbranch_scc1 L_end')
        I('s_lshl_b32 s88, s2, 3'); I('s_add_u32 s88, s88, 8')
        I('v_mov_b32 v12, s88'); I('v_mov_b32 v14, s84'); I('v_mov_b32 v15, s86')
        I('s_mov_b64 exec, 1')
        I('buffer_store_dwordx2 v[14:15], v12, %s, 0 offen' % srd(SDBG))
        execall()
    A.label('L_end')
    I('s_endpgm')
    A.label('L_code_end')
    nn = A.fix_hazards()
    hdr = open('cdna_kernels/%s.s.ref' % NAME).read().split('; Override launch')[0]
    s = hdr
    s += "; Override launch geometry by editing the next line (default: block=256,\n"
    s += "; @launch grid=(256,1,1) block=(256,1,1) lds=%d\n" % LDS_BYTES
    s += "; Fused dwconv5x5 + LayerNorm + GEMM + GELU + GRN + GEMM; persistent, one workgroup (14x14 pixels) per CU.\n"
    s += '.amdgcn_target "amdgcn-amd-amdhsa--gfx950"\n.text\n.globl %s_kernel\n.p2align 8\n.type %s_kernel,@function\n%s_kernel:\n' % (NAME, NAME, NAME)
    body = A.text()
    if OPT['pref']: body = body.replace('CODE_LAST', '(L_code_end - L_pc - 4)')
    s += body
    s += '''.section .rodata,"a"
.p2align 6
.amdhsa_kernel %s_kernel
  .amdhsa_next_free_vgpr 512
  .amdhsa_next_free_sgpr 102
  .amdhsa_accum_offset 256
  .amdhsa_group_segment_fixed_size 0
  .amdhsa_kernarg_size 72
  .amdhsa_user_sgpr_count 2
  .amdhsa_user_sgpr_kernarg_segment_ptr 1
  .amdhsa_system_sgpr_workgroup_id_x 1
  .amdhsa_float_denorm_mode_32 3
.end_amdhsa_kernel
''' % NAME
    open(OUT, 'w').write(s)
    if STAMPS: open(OUT + '.names', 'w').write('\n'.join(stamp_names))
    print('instructions', A.count(), 'nops inserted', nn, 'bytes', len(s))
main()
```
